```python
import torch

def _softmax(x, axis=-1):
    return torch.softmax(x, dim=axis)
def _gelu(x):
    return torch.nn.functional.gelu(x, approximate="tanh")
def _silu(x):
    return torch.nn.functional.silu(x)
def _sigmoid(x):
    return torch.sigmoid(x)
def _layernorm(x, axis=-1, eps=1e-5):
    m = x.mean(dim=axis, keepdim=True)
    v = x.var(dim=axis, keepdim=True, unbiased=False)
    return (x - m) / torch.sqrt(v + eps)
def _scatter_add(tgt, idx, src, axis=0):
    return tgt.clone().index_add_(axis, idx, src)
def _segment_sum(src, seg, n):
    out = torch.zeros((n,) + src.shape[1:], dtype=src.dtype)
    return out.index_add_(0, seg, src)
def _pad(x, pw):
    flat = tuple(v for pair in reversed(pw) for v in pair)
    return torch.nn.functional.pad(x, flat)

kernel_name = 'parallel_sum__ssm_conv_s5__glu_gated_swiglu__prompt'

def setup_inputs():

    _w = (lambda a: (lambda t: t.to(torch.bfloat16) if t.is_floating_point() else t)(torch.as_tensor(a)))
    def _A_setup():
        B, S, D = 1, 2048, 576
        P = D
        Lambda_re = -0.5 * (lambda _x: torch.exp(torch.as_tensor(_x)))((lambda *s: torch.randn(*s, dtype=torch.bfloat16) * 0.2)(P))
        Lambda_im = (lambda *s: torch.randn(*s, dtype=torch.bfloat16) * 0.8)(P) * 1.0
        B_re = (lambda *s: torch.randn(*s, dtype=torch.bfloat16) * 0.2)(P, D) * (D ** -0.5)
        B_im = (lambda *s: torch.randn(*s, dtype=torch.bfloat16) * 0.2)(P, D) * (D ** -0.5)
        C_re = (lambda *s: torch.randn(*s, dtype=torch.bfloat16) * 0.2)(D, P) * (P ** -0.5)
        C_im = (lambda *s: torch.randn(*s, dtype=torch.bfloat16) * 0.2)(D, P) * (P ** -0.5)
        log_dt = (lambda *s: torch.randn(*s, dtype=torch.bfloat16) * 0.2)(P) * 0.3 - 2.0
        Dskip = (lambda *s: torch.randn(*s, dtype=torch.bfloat16) * 0.05)(D)
        return {
            "x": _w((lambda *s: torch.randn(*s, dtype=torch.bfloat16) * 0.05)(B, S, D)),
            "Lambda_re": _w(Lambda_re),
            "Lambda_im": _w(Lambda_im),
            "B_re": _w(B_re),
            "B_im": _w(B_im),
            "C_re": _w(C_re),
            "C_im": _w(C_im),
            "log_dt": _w(log_dt),
            "Dskip": _w(Dskip),
        }
    _A_in = _A_setup()

    def _B_setup():
        B, S, D, F = 1, 2048, 576, 4608
        return {
            "x": _w((lambda *s: torch.randn(*s, dtype=torch.bfloat16) * 0.05)(B, S, D)),
            "w1": _w((lambda *s: torch.randn(*s, dtype=torch.bfloat16) * 0.4)(D, F) * (2.0 / D) ** 0.5),
            "w3": _w((lambda *s: torch.randn(*s, dtype=torch.bfloat16) * 0.4)(D, F) * (2.0 / D) ** 0.5),
            "w2": _w((lambda *s: torch.randn(*s, dtype=torch.bfloat16) * 0.4)(F, D) * (2.0 / F) ** 0.5),
        }
    _B_in = _B_setup()

    return {
        "A_x": _A_in["x"],
        "A_Lambda_re": _A_in["Lambda_re"],
        "A_Lambda_im": _A_in["Lambda_im"],
        "A_B_re": _A_in["B_re"],
        "A_B_im": _A_in["B_im"],
        "A_C_re": _A_in["C_re"],
        "A_C_im": _A_in["C_im"],
        "A_log_dt": _A_in["log_dt"],
        "A_Dskip": _A_in["Dskip"],
        "B_x": _B_in["x"],
        "B_w1": _B_in["w1"],
        "B_w3": _B_in["w3"],
        "B_w2": _B_in["w2"],
    }

def reference(A_x, A_Lambda_re, A_Lambda_im, A_B_re, A_B_im, A_C_re, A_C_im, A_log_dt, A_Dskip, B_x, B_w1, B_w3, B_w2):
    def _A_ref(x, Lambda_re, Lambda_im, B_re, B_im, C_re, C_im, log_dt, Dskip):
        Bsz, L, H = x.shape
        Lam = Lambda_re + 1j * Lambda_im
        Bmat = B_re + 1j * B_im
        Cmat = C_re + 1j * C_im
        dt = torch.exp(log_dt)
        Lam_bar = torch.exp(dt * Lam)
        B_bar = ((Lam_bar - 1.0) / Lam)[:, None] * Bmat
        Bu = torch.einsum("bld,pd->blp", x + 0j, B_bar)
        h = torch.zeros_like(Bu[:, 0, :])
        hs = []
        for t in range(L):
            h = Lam_bar[None, :] * h + Bu[:, t, :]
            hs.append(h)
        hseq = torch.stack(hs, 1)
        y = 2.0 * torch.einsum("blp,dp->bld", hseq, Cmat).real + x * Dskip[None, None, :]
        return y

    def _B_ref(x, w1, w3, w2):
        gate = torch.einsum("bsd,df->bsf", x, w1)
        up = torch.einsum("bsd,df->bsf", x, w3)
        h = _silu(gate) * up
        out = torch.einsum("bsf,fd->bsd", h, w2)
        return out

    x = A_x
    xn = _layernorm(x, axis=-1)
    return x + _A_ref(xn, A_Lambda_re, A_Lambda_im, A_B_re, A_B_im, A_C_re, A_C_im, A_log_dt, A_Dskip) + _B_ref(xn, B_w1, B_w3, B_w2)
```

```python
import re

class Em:
    def __init__(self):
        self.lines = []
        self.vmq = []
        self.lgq = []
    def fork(self):
        e = Em(); e.vmq = list(self.vmq); e.lgq = list(self.lgq); return e
    def I(self, text):
        for t in text.split("\n"):
            t = t.strip()
            if t: self.lines.append(t)
    def vm(self, text, tag=None):
        self.lines.append(text); self.vmq.append(tag)
    def ds(self, text, tag=None):
        self.lines.append(text); self.lgq.append(tag)
    @staticmethod
    def _need(q, tags, mx):
        if tags is None: return None
        if tags == "all":
            if not q: return None
            q.clear(); return 0
        if not isinstance(tags, (list, set)): tags = [tags]
        idx = -1
        for i, t in enumerate(q):
            if t in tags: idx = i
        if idx < 0: return None
        n = len(q) - 1 - idx
        if n > mx:
            n = mx; idx = len(q) - 1 - n
        del q[:idx+1]
        return n
    def wait(self, vm=None, lg=None):
        a = self._need(self.vmq, vm, 63); b = self._need(self.lgq, lg, 15)
        parts = []
        if a is not None: parts.append(f"vmcnt({a})")
        if b is not None: parts.append(f"lgkmcnt({b})")
        if parts: self.lines.append("s_waitcnt " + " ".join(parts))
    def text(self): return "\n".join(self.lines)

def v(a, n=1): return f"v{a}" if n == 1 else f"v[{a}:{a+n-1}]"
def s(a, n=1): return f"s{a}" if n == 1 else f"s[{a}:{a+n-1}]"

TRANS = ("v_exp_f32", "v_rcp_f32", "v_rsq_f32", "v_sqrt_f32", "v_sin_f32", "v_cos_f32", "v_log_f32")
_reg = re.compile(r"^(-|\|)?(v|s|a)(\d+|\[(\d+):(\d+)\])\|?$")
def regs(op):
    op = op.strip()
    if op in ("vcc",): return {("s", 106), ("s", 107)}
    if op == "m0": return {("s", 124)}
    if op == "exec": return {("s", 126), ("s", 127)}
    m = _reg.match(op)
    if not m: return set()
    k = m.group(2)
    if m.group(4) is not None: return {(k, i) for i in range(int(m.group(4)), int(m.group(5)) + 1)}
    return {(k, int(m.group(3)))}

def parse(line):
    line = line.split(";")[0].strip()
    if not line or line.endswith(":") or line.startswith("."): return None
    sp = line.split(None, 1)
    op = sp[0]
    for suf in ("_e32", "_e64"):
        if op.endswith(suf): op = op[:-4]
    rest = sp[1] if len(sp) > 1 else ""
    ops = [o.strip() for o in rest.split(",")]
    mods = ""
    if ops and " " in ops[-1]:
        a, mods = ops[-1].split(None, 1); ops[-1] = a
    d = dict(op=op, ops=ops, mods=mods, w=set(), r=set(), cls="other", ws=1)
    R = lambda i: regs(ops[i]) if i < len(ops) else set()
    if op == "s_nop": d["ws"] = int(ops[0], 0) + 1; d["cls"] = "nop"; return d
    if op.startswith("v_mfma"):
        d["cls"] = "mfma"; d["w"] = R(0); d["A"] = R(1); d["B"] = R(2); d["C"] = R(3); d["r"] = d["A"] | d["B"] | d["C"]
        d["pass"] = 4 if "16x16x32" in op else 8
    elif op.startswith("v_"):
        d["cls"] = "valu"
        d["w"] = R(0); d["r"] = set().union(*[R(i) for i in range(1, len(ops))]) if len(ops) > 1 else set()
        if op.startswith("v_cmp") is False and op.startswith("v_cndmask") and len(ops) == 3: d["r"] |= regs("vcc")
        if op in ("v_fmac_f32", "v_dot2c_f32_bf16"): d["r"] |= d["w"]
        if op.startswith("v_permlane"): d["w"] = R(0) | R(1); d["r"] = R(0) | R(1)
        if op.startswith("v_add_co") or op.startswith("v_addc_co"): d["w"] = R(0) | R(1); d["r"] = set().union(*[R(i) for i in range(2, len(ops))])
    elif op.startswith("ds_"):
        d["cls"] = "ds"
        if op.startswith("ds_write"): d["r"] = set().union(*[R(i) for i in range(len(ops))])
        else: d["w"] = R(0); d["r"] = set().union(*[R(i) for i in range(1, len(ops))])
    elif op.startswith("buffer_") or op.startswith("global_"):
        d["cls"] = "vmem"
        lds = re.search(r"\blds\b", mods) is not None
        d["lds"] = lds
        if "store" in op or ("atomic" in op):
            d["r"] = set().union(*[R(i) for i in range(len(ops))]); d["data"] = R(0)
            d["wide"] = "x3" in op or "x4" in op
        elif lds: d["r"] = set().union(*[R(i) for i in range(len(ops))]) | regs("m0")
        else: d["w"] = R(0); d["r"] = set().union(*[R(i) for i in range(1, len(ops))])
    elif op.startswith("s_"):
        d["cls"] = "salu"
        if op.startswith(("s_cmp", "s_cbranch", "s_branch", "s_waitcnt", "s_barrier", "s_endpgm", "s_setprio", "s_bitcmp", "s_sleep")):
            d["r"] = set().union(*[R(i) for i in range(len(ops))]) if ops else set()
        else:
            d["w"] = R(0); d["r"] = set().union(*[R(i) for i in range(1, len(ops))]) if len(ops) > 1 else set()
            if "saveexec" in op: d["w"] |= regs("exec")
    return d

def check_hazards(lines, name=""):
    ins = [(l, parse(l)) for l in lines]
    ins = [(l, d) for l, d in ins if d]
    errs = []
    n = len(ins)
    for i in range(n):
        li, p = ins[i]
        dist = 0
        for j in range(i + 1, min(n, i + 24)):
            lj, c = ins[j]
            need = 0
            pv = {r for r in p["w"] if r[0] == "v"}; ps = {r for r in p["w"] if r[0] == "s"}
            if p["cls"] == "valu":
                if c["cls"] == "mfma" and pv & c["r"]: need = max(need, 2)
                if p["op"] in TRANS and c["cls"] == "valu" and c["op"] not in TRANS and pv & c["r"]: need = max(need, 1)
                if p["op"].startswith("v_dot2") and c["cls"] in ("valu", "mfma", "vmem", "ds"):
                    if c["op"] == p["op"]:
                        ab = regs(c["ops"][1]) | regs(c["ops"][2])
                        if pv & ab: need = max(need, 3)
                    elif pv & (c["r"] | c["w"]): need = max(need, 3)
                if c["cls"] == "valu" and c["op"] in ("v_readfirstlane_b32", "v_readlane_b32") and pv & c["r"]: need = max(need, 1)
                if c["cls"] == "valu" and (c["op"].startswith("v_permlane") or "dpp" in c["op"] or "row_" in c["mods"] or "quad_perm" in c["mods"]) and pv & c["r"]: need = max(need, 2)
                if ps:
                    if c["cls"] == "valu" and ps & c["r"]: need = max(need, 2)
                    if c["cls"] == "vmem" and ps & c["r"]: need = max(need, 5)
                    if c["cls"] == "salu" and ps & c["r"]: need = max(need, 1)
            if p["cls"] == "mfma":
                big = 8 if p["pass"] == 4 else 12
                if c["cls"] == "mfma":
                    if pv & (c["A"] | c["B"]): need = max(need, big)
                    if pv & c["C"] and not (c["C"] == pv and c["pass"] == p["pass"]): need = max(need, 6 if p["pass"] == 4 else 10)
                    if pv & c["w"] and not (c["C"] == pv): need = max(need, big)
                elif c["cls"] in ("valu", "vmem", "ds") and pv & (c["r"] | c["w"]): need = max(need, big)
                if c["cls"] == "valu" and p["C"] & c["w"]: need = max(need, 3 if p["pass"] == 4 else 7)
            if p["cls"] == "salu" and ("s", 124) in p["w"] and c["cls"] == "vmem" and c.get("lds"): need = max(need, 1)
            if p["cls"] == "vmem" and p.get("wide") and p["data"] & c["w"]: need = max(need, 2)
            if need > dist:
                errs.append(f"[{name}] hazard need {need} have {dist}: '{li}' -> '{lj}'")
            dist += c["ws"]
            if dist >= 20: break
    return errs

def interleave(slots, items):
    out = [[] for _ in range(slots)]
    n = len(items)
    for i, it in enumerate(items):
        out[i * slots // n].append(it)
    return out
```

```python
from asmfw import *
import math, struct

WS_HF, WS_HS, WS_SAGG, WS_STATS, WS_PART, WS_Y, WS_STAMP = 0, 0x1200000, 0x1680000, 0x16A0000, 0x1700000, 0x2000000, 0x2800000
WS_SIZE = 0x3000000
OOB = 0x40000000
LOG2E = 1.4426950408889634
def fl(x): return "0x%08x" % struct.unpack("<I", struct.pack("<f", x))[0]

def X(s_, a): return 8*s_ + 4*a
def ACC(buf, b, mat, a): return 144 + 32*buf + 16*b + 8*mat + 4*a
def AF(i): return 208 + 4*(i % 6)
T = list(range(232, 240))
vRF = [240, 241]; vRS = [242, 243]; vDF = 244; vDS = 245; vST = 246
C1 = [247, 248]; C2 = [249, 250]
vAD = 251; KP = (252, 253)
vCT = 254; vDUM = 255
sW, sTG, sPAR, sM, sS = 3, 4, 5, 6, 7
SX, SWW, SBR, SBI, SWS, SPF = 8, 12, 16, 20, 24, 28
sWv, sCUR, sNXT, sTMP, sHST, sIDX, sCNT, sSB0, sPFO, sAGG = 64, 65, 66, 67, 68, 69, 70, 71, 72, 73
MQ = [None, 74, 76, 78]
MT = [None, 80, 82, 84]
sSLOT, sT2, sT3, sCG, sE0, sE1 = 86, 87, 88, 89, 90, 91
sSTMP, sSTO = 92, 94
sHSN = 95
MISC = 147456
L_CT, L_RS, L_EX1, L_EX2 = MISC, MISC + 8064, MISC + 8064 + 1024, MISC + 8064 + 1024 + 4096

class Cfg:
    def __init__(self, **kw):
        self.B = 6; self.stamps = False; self.rot = True; self.touch = True; self.pf = True
        self.__dict__.update(kw)

def srd(r): return f"s[{r}:{r+3}]"

def stamp(e, cfg, idx):
    if not cfg.stamps: return
    e.I(f"s_memtime s[{sSTMP}:{sSTMP+1}]")
    e.I("s_waitcnt lgkmcnt(0)"); e.lgq.clear()
    e.I(f"v_mov_b32 v{vDUM}, s{sSTMP}")
    e.vm(f"buffer_store_dword v{vDUM}, off, {srd(SWS)}, s{sSTO} offset:{idx*4}")

def dma_slot(e, typ, u, base):
    e.I(f"s_add_u32 m0, s{sWv}, {u*8192}")
    if typ == "F":
        e.I(f"s_add_u32 s{sTMP}, s{base}, {u*32*9216}")
        e.vm(f"buffer_load_dwordx4 v{vDF}, {srd(SWW)}, s{sTMP} offen lds", ("slot", u))
    else:
        e.I(f"s_add_u32 s{sTMP}, s{base}, {(u>>1)*128}")
        e.vm(f"buffer_load_dwordx4 v{vDS}, {srd(SBI if (u & 1) else SBR)}, s{sTMP} offen lds", ("slot", u))

def read_frag(e, typ, s_, b, mat, buf, tag):
    r = AF(buf)
    if typ == "F":
        off = (s_ % 6)*8192 + mat*4096
        e.ds(f"ds_read_b64_tr_b16 v[{r}:{r+1}], v{vRF[b]} offset:{off}", None)
        e.ds(f"ds_read_b64_tr_b16 v[{r+2}:{r+3}], v{vRF[b]} offset:{off+512}", tag)
    else:
        off = (((s_ % 6) & ~1) + mat)*8192 + b*4096
        e.ds(f"ds_read_b128 v[{r}:{r+3}], v{vRS[s_ & 1]} offset:{off}", tag)

def bump(e, typ, delta):
    for r in (vRF if typ == "F" else vRS):
        e.I(f"v_add_u32 v{r}, {delta}, v{r}" if delta > 0 else f"v_subrev_u32 v{r}, {-delta}, v{r}")

def V(t): return lambda e: e.I(t)
def DS(t, tag=None): return lambda e: e.ds(t, tag)
def VM(t, tag=None): return lambda e: e.vm(t, tag)
def WL(tag): return lambda e: e.wait(lg=tag)

def conv_items(s_, negm):
    it = []
    for a in range(2):
        x = X(s_, a)
        for i in range(4):
            it.append(V(f"v_dot2_f32_bf16 v{T[2*i]}, v{x+i}, s{sE0}, v{negm[a]}"))
            it.append(V(f"v_dot2_f32_bf16 v{T[2*i+1]}, v{x+i}, s{sE1}, v{negm[a]}"))
        for i in range(4):
            it.append(V(f"v_cvt_pk_bf16_f32 v{x+i}, v{T[2*i]}, v{T[2*i+1]}"))
    return it

def act_items(buf):
    it = []
    for a in range(2):
        for b in range(2):
            G = ACC(buf, b, 0, a); U = ACC(buf, b, 1, a)
            for r in range(4): it.append(V(f"v_mul_f32 v{T[r]}, v{G+r}, v{C1[a]}"))
            for r in range(4): it.append(V(f"v_exp_f32 v{T[r]}, v{T[r]}"))
            for r in range(4): it.append(V(f"v_mul_f32 v{U+r}, v{U+r}, v{C2[a]}"))
            for r in range(4): it.append(V(f"v_add_f32 v{T[r]}, 1.0, v{T[r]}"))
            for r in range(4): it.append(V(f"v_rcp_f32 v{T[r]}, v{T[r]}"))
            for r in range(4): it.append(V(f"v_mul_f32 v{G+r}, v{G+r}, v{T[r]}"))
            for r in range(4): it.append(V(f"v_mul_f32 v{U+r}, v{U+r}, v{G+r}"))
        G0 = ACC(buf, 0, 0, a); U0 = ACC(buf, 0, 1, a); U1 = ACC(buf, 1, 1, a)
        it.append(V(f"v_cvt_pk_bf16_f32 v{G0}, v{U0}, v{U0+1}"))
        it.append(V(f"v_cvt_pk_bf16_f32 v{G0+1}, v{U0+2}, v{U0+3}"))
        it.append(V(f"v_cvt_pk_bf16_f32 v{G0+2}, v{U1}, v{U1+1}"))
        it.append(V(f"v_cvt_pk_bf16_f32 v{G0+3}, v{U1+2}, v{U1+3}"))
        it.append(VM(f"buffer_store_dwordx4 v[{G0}:{G0+3}], v{vST}, {srd(SWS)}, s{sHST} offen offset:{a*1024}"))
    return it

def rs_col_addr(dst, tmp):
    return [V(f"v_bfe_u32 v{dst}, v{vST}, 6, 2"), V(f"v_bfe_u32 v{tmp}, v{vST}, 4, 2"),
            V(f"s_lshr_b32 s{sT2}, s{sWv}, 3"), V(f"s_add_u32 s{sT2}, s{sT2}, {L_RS}"),
            V(f"v_lshl_add_u32 v{dst}, v{dst}, 5, s{sT2}"), V(f"v_lshl_add_u32 v{dst}, v{tmp}, 2, v{dst}")]

def reload_c_items():
    it = rs_col_addr(T[4], T[5])
    it += [DS(f"ds_read_b32 v{C2[0]}, v{T[4]}", "rc0"), DS(f"ds_read_b32 v{C2[1]}, v{T[4]} offset:16", "rc1"), WL("rc1")]
    for a in range(2):
        it += [V(f"v_mul_f32 v{C1[a]}, {fl(-LOG2E)}, v{C2[a]}"), V(f"v_mul_f32 v{C2[a]}, v{C2[a]}, v{C2[a]}")]
    return it

def cmul_acc(dr, di, ar, ai, br, bi):
    return [V(f"v_fmac_f32 v{dr}, v{ar}, v{br}"), V(f"v_fmac_f32 v{di}, v{ar}, v{bi}"),
            V(f"v_fma_f32 v{dr}, -v{ai}, v{bi}, v{dr}"), V(f"v_fmac_f32 v{di}, v{ai}, v{br}")]

_lbl = [0]
def spost_items(buf, nblk):
    P = [[C1[0], C1[1]], [C2[0], C2[1]]]
    pre, post = [], []
    adr = vAD
    kp = f"v[{KP[0]}:{KP[1]}]"
    t03 = f"v[{T[0]}:{T[3]}]"; t47 = f"v[{T[4]}:{T[7]}]"
    for b in range(nblk):
        R = ACC(buf, b, 0, 0); Im = ACC(buf, b, 1, 0)
        cto = b*32*56
        pre += [V(f"v_bfe_u32 v{adr}, v{vST}, 8, 2"), V(f"s_lshr_b32 s{sT2}, s{sWv}, 3"), V(f"s_add_u32 s{sT2}, s{sT2}, {L_RS}"),
                V(f"v_lshl_add_u32 v{adr}, v{adr}, 5, s{sT2}"),
                DS(f"ds_read_b64 {kp}, v{vCT} offset:{cto}", "K"),
                DS(f"ds_read_b128 {t03}, v{adr}", "rs0"), DS(f"ds_read_b128 {t47}, v{adr} offset:16", "rs1"), WL("rs1")]
        tt = adr
        for j in range(8):
            pre += [V(f"v_mul_f32 v{tt}, v{KP[0]}, v{R+j}"), V(f"v_fmac_f32 v{tt}, v{KP[1]}, v{Im+j}"),
                    V(f"v_mul_f32_e64 v{Im+j}, -v{KP[0]}, v{Im+j}"), V(f"v_fmac_f32 v{Im+j}, v{KP[1]}, v{R+j}"),
                    V(f"v_mul_f32 v{R+j}, v{tt}, v{T[j]}"), V(f"v_mul_f32 v{Im+j}, v{Im+j}, v{T[j]}")]
        pre += [DS(f"ds_read_b64 {kp}, v{vCT} offset:{cto+8}", "L"), WL("L")]
        pr, pi = R, Im
        for j in range(1, 8):
            nr, ni = (T[0], T[1]) if (j & 1) else (T[2], T[3])
            pre += [V(f"v_fma_f32 v{nr}, v{KP[0]}, v{pr}, v{R+j}"), V(f"v_fma_f32 v{ni}, v{KP[0]}, v{pi}, v{Im+j}"),
                    V(f"v_fma_f32 v{nr}, -v{KP[1]}, v{pi}, v{nr}"), V(f"v_fmac_f32 v{ni}, v{KP[1]}, v{pr}")]
            pr, pi = nr, ni
        pre += [V(f"v_bfe_u32 v{adr}, v{vST}, 4, 4"), V(f"v_bfe_u32 v{T[4]}, v{vST}, 8, 2"),
                V(f"s_lshr_b32 s{sT2}, s{sWv}, 1"), V(f"s_add_u32 s{sT2}, s{sT2}, {L_EX1}"),
                V(f"v_lshl_add_u32 v{adr}, v{adr}, 5, s{sT2}"), V(f"v_lshl_add_u32 v{T[4]}, v{T[4]}, 3, v{adr}"),
                DS(f"ds_write_b64 v{T[4]}, v[{T[0]}:{T[1]}]", "ew"),
                DS(f"ds_read_b64 {kp}, v{vCT} offset:{cto+32}", "L8"), WL("ew"),
                DS(f"ds_read_b128 {t03}, v{adr}", "e01"), DS(f"ds_read_b128 {t47}, v{adr} offset:16", "e23"), WL("e23")]
        for k in range(1, 4):
            pre += cmul_acc(T[2*k], T[2*k+1], KP[0], KP[1], T[2*k-2], T[2*k-1])
        for k in range(2):
            pre += [V(f"v_cndmask_b32_e64 v{P[b][k]}, 0, v{T[k]}, s[{MQ[1]}:{MQ[1]+1}]"),
                    V(f"v_cndmask_b32_e64 v{P[b][k]}, v{P[b][k]}, v{T[2+k]}, s[{MQ[2]}:{MQ[2]+1}]"),
                    V(f"v_cndmask_b32_e64 v{P[b][k]}, v{P[b][k]}, v{T[4+k]}, s[{MQ[3]}:{MQ[3]+1}]")]
        pre += [V(f"s_mul_i32 s{sT2}, s{sTG}, 504"), V(f"s_lshl_b32 s{sT3}, s{sPAR}, 10"), V(f"s_add_u32 s{sT2}, s{sT2}, s{sT3}"),
                V(f"v_subrev_u32 v{adr}, s{sT2}, v{adr}"),
                DS(f"ds_write_b64 v{adr}, v[{T[6]}:{T[7]}] offset:{L_EX2 - L_EX1 + b*512}", "tw")]
    for b in range(nblk):
        R = ACC(buf, b, 0, 0); Im = ACC(buf, b, 1, 0)
        cto = b*32*56
        post += [V(f"v_bfe_u32 v{adr}, v{vST}, 4, 4"), V(f"s_lshl_b32 s{sT2}, s{sPAR}, 10"), V(f"s_add_u32 s{sT2}, s{sT2}, {L_EX2 + b*512}"),
                 V(f"v_lshl_add_u32 v{adr}, v{adr}, 5, s{sT2}"),
                 DS(f"ds_read_b64 {kp}, v{vCT} offset:{cto+16}", "L32"),
                 DS(f"ds_read_b128 {t03}, v{adr}", "t01"), DS(f"ds_read_b128 {t47}, v{adr} offset:16", "t23"),
                 V(f"v_bfe_u32 v{adr}, v{vST}, 8, 2"), V(f"v_lshl_add_u32 v{adr}, v{adr}, 3, v{vCT}"), WL("t23")]
        for k in range(1, 4):
            post += cmul_acc(T[2*k], T[2*k+1], KP[0], KP[1], T[2*k-2], T[2*k-1])
        post += [DS(f"ds_read_b64 {kp}, v{adr} offset:{cto+24}", "LQ"), V(f"v_lshrrev_b32 v{adr}, 1, v{vST}")]
        def aggst(e, b=b):
            _lbl[0] += 1; L = f"L_agg{_lbl[0]}"
            e.I(f"s_cmp_lg_u32 s{sTG}, 0\ns_cbranch_scc1 {L}\ns_mov_b64 exec, 0xffff")
            e.I(f"buffer_store_dwordx2 v[{T[6]}:{T[7]}], v{adr}, {srd(SWS)}, s{sAGG} offen offset:{b*256}")
            e.I(f"s_mov_b64 exec, -1\n{L}:")
        post += [aggst]
        for k in range(2):
            post += [V(f"v_cndmask_b32_e64 v{T[k]}, 0, v{T[k]}, s[{MT[1]}:{MT[1]+1}]"),
                     V(f"v_cndmask_b32_e64 v{T[k]}, v{T[k]}, v{T[2+k]}, s[{MT[2]}:{MT[2]+1}]"),
                     V(f"v_cndmask_b32_e64 v{T[k]}, v{T[k]}, v{T[4+k]}, s[{MT[3]}:{MT[3]+1}]")]
        post += [WL("LQ")]
        post += cmul_acc(P[b][0], P[b][1], KP[0], KP[1], T[0], T[1])
        post += [DS(f"ds_read_b64 {kp}, v{vCT} offset:{cto+8}", "L"), WL("L")]
        pr, pi = P[b]
        for j in range(8):
            post += cmul_acc(R+j, Im+j, KP[0], KP[1], pr, pi)
            pr, pi = R+j, Im+j
        for base in (R, Im):
            for k in range(4):
                post.append(V(f"v_cvt_pk_bf16_f32 v{base+k}, v{base+2*k}, v{base+2*k+1}"))
        post += [V(f"s_add_u32 s{sT2}, s{sHST}, {b*16384}"),
                 VM(f"buffer_store_dwordx4 v[{R}:{R+3}], v{vST}, {srd(SWS)}, s{sT2} offen"),
                 VM(f"buffer_store_dwordx4 v[{Im}:{Im+3}], v{vST}, {srd(SWS)}, s{sT2} offen offset:1024")]
    post += [V(f"v_add_u32 v{vCT}, {64*56}, v{vCT}")]
    return pre, post

def pf_items():
    return [V(f"v_lshlrev_b32 v{T[7]}, 3, v{vST}"), V(f"v_and_b32 v{T[7]}, 0x1f80, v{T[7]}"),
            VM(f"buffer_load_dword v{vDUM}, v{T[7]}, {srd(SPF)}, s{sPFO} offen")]

def phase(e, cfg, mf, buf, side, nxt, rot0=0):
    B = cfg.B; LEAD = 18 - B
    dtyp = "F" if mf == "F" else "S"
    full = [(0, 0), (0, 1), (1, 0), (1, 1)]
    per = {"F": full, "S": full, "Q0": full[:2], "Q1": []}[mf]
    seq = []
    n = rot0
    for s_ in range(18):
        for (b, mat) in per:
            seq.append((s_, b, mat, n)); n += 1
        if s_ == 0: n = rot0 + 4
    if mf == "Q1": n = rot0 + 4 + 34
    nrot = n % 6
    nseq = [(18, b, mat, n + i) for i, (b, mat) in enumerate(full)] if nxt else []
    allf = seq + nseq
    st = dict(ri=len([f for f in seq if f[0] == 0]), third=0)
    def issue_read():
        s_, b, mat, bi = allf[st["ri"]]; st["ri"] += 1
        th = 0 if s_ == 18 else s_ // 6
        if th != st["third"]:
            bump(e, dtyp, (th - st["third"])*49152); st["third"] = th
        read_frag(e, nxt if s_ == 18 else dtyp, s_ % 18, b, mat, bi, ("f", bi % 6))
    def try_reads(step, ci, mx):
        k = 0
        while k < mx and st["ri"] < len(allf) and st["ri"] - ci <= 4 and allf[st["ri"]][0] <= B*(step // B) + B:
            issue_read(); k += 1
    nslots = 2*max(len(per), 1)
    ci = 0
    for s_ in range(18):
        if s_ % B == 0:
            hi = s_ + B
            if hi >= 18 and not nxt: hi = 17
            if (nxt if hi >= 18 else dtyp) == "S": hi |= 1
            e.wait(vm=("slot", hi % 18), lg="tw")
            e.I("s_barrier")
        items = side.get(s_, [])
        dist = interleave(nslots, items) if items else [[] for _ in range(nslots)]
        mine = [f for f in seq if f[0] == s_]
        u = s_ + LEAD
        def do_dma():
            if u < 18: dma_slot(e, dtyp, u, sCUR)
            elif nxt: dma_slot(e, nxt, u - 18, sNXT)
        if not mine:
            do_dma()
            for d in dist:
                for it in d: it(e)
        for i, (_, b, mat, bi) in enumerate(mine):
            e.wait(lg=("f", bi % 6))
            for a in range(2):
                d = ACC(buf, b, mat, a); c = "0" if s_ == 0 else v(d, 4)
                if mf == "F": e.I(f"v_mfma_f32_16x16x32_bf16 {v(d,4)}, {v(AF(bi),4)}, {v(X(s_,a),4)}, {c}")
                else: e.I(f"v_mfma_f32_16x16x32_bf16 {v(d,4)}, {v(X(s_,a),4)}, {v(AF(bi),4)}, {c}")
                try_reads(s_, ci, 1)
                for it in dist[2*i + a]: it(e)
            ci += 1
            if i == 1: do_dma()
    while st["ri"] < len(allf): issue_read()
    if st["third"] != 0: bump(e, dtyp, -st["third"]*49152)
    return nrot

def spread(items, s0, s1):
    parts = interleave(s1 - s0, items)
    return {s0 + i: p for i, p in enumerate(parts)}
def merge(*ds):
    out = {}
    for d in ds:
        for k, x in d.items(): out.setdefault(k, []).extend(x)
    return out

def bf16r(e, dst, src):
    e.I(f"v_cvt_pk_bf16_f32 v{dst}, v{src}, v{src}\nv_lshlrev_b32 v{dst}, 16, v{dst}")

def prologue_common(e, cfg):
    e.I(f"""s_cmp_ge_u32 s2, 256
    s_cbranch_scc1 LA_end
    s_load_dwordx16 s[32:47], s[0:1], 0
    s_load_dwordx16 s[48:63], s[0:1], 64
    v_lshrrev_b32 v1, 6, v0
    v_and_b32 v{vAD}, 63, v0
    s_and_b32 s{sT2}, s2, 7
    v_readfirstlane_b32 s{sW}, v1
    s_lshr_b32 s{sSLOT}, s2, 3
    s_lshr_b32 s{sS}, s{sT2}, 1
    s_and_b32 s{sM}, s{sT2}, 1
    s_lshl_b32 s{sM}, s{sM}, 3
    s_lshr_b32 s{sT3}, s{sSLOT}, 2
    s_add_u32 s{sM}, s{sM}, s{sT3}
    s_and_b32 s{sCG}, s{sSLOT}, 3
    s_and_b32 s{sTG}, s{sW}, 3
    s_lshr_b32 s{sPAR}, s{sW}, 2
    s_lshl_b32 s{sWv}, s{sW}, 10
    s_mov_b32 s{sE0}, 0x00003f80
    s_mov_b32 s{sE1}, 0x3f800000""")
    L = vAD
    e.I(f"""v_lshrrev_b32 v4, 5, v{L}
    v_bfe_u32 v5, v{L}, 3, 2
    v_lshl_add_u32 v4, v4, 3, v5
    s_lshr_b32 s{sT2}, s{sW}, 1
    s_lshl_b32 s{sT2}, s{sT2}, 5
    s_and_b32 s{sT3}, s{sW}, 1
    s_lshl_b32 s{sT3}, s{sT3}, 2
    s_add_u32 s{sT2}, s{sT2}, s{sT3}
    s_lshl_b32 s{sT3}, s{sM}, 7
    s_add_u32 s{sT2}, s{sT2}, s{sT3}
    v_add_u32 v4, s{sT2}, v4
    v_mul_u32_u24 v4, 1152, v4
    v_lshrrev_b32 v5, 4, v{L}
    v_and_b32 v6, 7, v{L}
    v_xor_b32 v5, v5, v6
    v_lshl_add_u32 v2, v5, 4, v4
    v_xor_b32 v3, 64, v2
    v_add_u32 v3, {16*1152}, v3
    s_waitcnt lgkmcnt(0)
    s_mov_b32 s{SX}, s32
    s_mov_b32 s{SX+1}, s33
    s_mov_b32 s{SX+2}, {2048*1152}
    s_mov_b32 s{SX+3}, 0x20000
    s_lshl_b32 s{sT3}, s{sW}, 11""")
    for p in range(9):
        for i in range(2):
            e.I(f"s_add_u32 m0, s{sT3}, {16384*(p+1) + 1024*i}")
            e.I(f"s_movk_i32 s{sTMP}, {128*p}")
            e.vm(f"buffer_load_dwordx4 v{2+i}, {srd(SX)}, s{sTMP} offen lds", ("x", p))
    e.I(f"""s_cmp_eq_u32 s{sPAR}, 0
    s_cselect_b32 s{SWW}, s52, s54
    s_cselect_b32 s{SWW+1}, s53, s55
    s_mov_b32 s{SWW+2}, {576*9216}
    s_mov_b32 s{SWW+3}, 0x20000
    s_mov_b32 s{SBR}, s38
    s_mov_b32 s{SBR+1}, s39
    s_mov_b32 s{SBR+2}, {576*1152}
    s_mov_b32 s{SBR+3}, 0x20000
    s_mov_b32 s{SBI}, s40
    s_mov_b32 s{SBI+1}, s41
    s_mov_b32 s{SBI+2}, {576*1152}
    s_mov_b32 s{SBI+3}, 0x20000
    s_mov_b32 s{SWS}, s62
    s_mov_b32 s{SWS+1}, s63
    s_mov_b32 s{SWS+2}, {WS_SIZE}
    s_mov_b32 s{SWS+3}, 0x20000""")
    e.I(f"""v_lshrrev_b32 v4, 3, v{L}
    s_lshl_b32 s{sT2}, s{sTG}, 3
    v_add_u32 v4, s{sT2}, v4
    v_mul_u32_u24 v4, 9216, v4
    v_bfe_u32 v5, v{L}, 4, 1
    s_and_b32 s{sT2}, s{sW}, 1
    s_lshl_b32 s{sT2}, s{sT2}, 1
    v_or_b32 v5, s{sT2}, v5
    v_bfe_u32 v6, v{L}, 1, 2
    v_xor_b32 v5, v5, v6
    v_lshl_add_u32 v4, v5, 5, v4
    v_and_b32 v6, 1, v{L}
    v_lshl_add_u32 v{vDF}, v6, 4, v4""")
    e.I(f"""v_lshrrev_b32 v4, 3, v{L}
    s_lshl_b32 s{sT2}, s{sW}, 3
    v_add_u32 v4, s{sT2}, v4
    v_mul_u32_u24 v4, 1152, v4
    v_lshrrev_b32 v5, 4, v{L}
    s_and_b32 s{sT2}, s{sW}, 1
    s_lshl_b32 s{sT2}, s{sT2}, 2
    v_or_b32 v5, s{sT2}, v5
    v_and_b32 v6, 7, v{L}
    v_xor_b32 v5, v5, v6
    v_lshl_add_u32 v{vDS}, v5, 4, v4""")
    e.I(f"""s_lshl_b32 s{sT2}, s{sTG}, 11
    s_lshl_b32 s{sT3}, s{sPAR}, 13
    s_add_u32 s{sT2}, s{sT2}, s{sT3}
    v_lshl_add_u32 v{vST}, v{L}, 4, s{sT2}
    v_lshrrev_b32 v4, 4, v{L}
    v_bfe_u32 v5, v{L}, 2, 2
    v_lshl_add_u32 v6, v4, 3, v5
    v_lshlrev_b32 v6, 7, v6
    v_and_b32 v9, 3, v{L}
    v_lshl_add_u32 v6, v9, 3, v6
    v_lshrrev_b32 v5, 1, v5
    v_and_b32 v9, 1, v4
    v_lshl_or_b32 v5, v9, 1, v5
    s_lshl_b32 s{sT2}, s{sPAR}, 1
    v_xor_b32 v5, s{sT2}, v5
    v_lshl_add_u32 v{vRF[0]}, v5, 5, v6
    v_xor_b32 v{vRF[1]}, 32, v{vRF[0]}
    v_and_b32 v5, 15, v{L}
    v_lshrrev_b32 v6, 1, v5
    v_xor_b32 v6, v6, v4
    v_lshlrev_b32 v6, 4, v6
    v_lshl_add_u32 v6, v5, 7, v6
    s_lshl_b32 s{sT2}, s{sPAR}, 11
    v_add_u32 v{vRS[0]}, s{sT2}, v6
    v_xor_b32 v{vRS[1]}, 64, v{vRS[0]}
    s_lshl_b32 s{sT2}, s{sTG}, 12
    v_add_u32 v{KP[0]}, s{sT2}, v6
    v_xor_b32 v{KP[1]}, 64, v{KP[0]}
    v_cmp_eq_u32 s[{MQ[1]}:{MQ[1]+1}], 1, v4
    v_cmp_eq_u32 s[{MQ[2]}:{MQ[2]+1}], 2, v4
    v_cmp_eq_u32 s[{MQ[3]}:{MQ[3]+1}], 3, v4
    s_cmp_eq_u32 s{sTG}, 1
    s_cselect_b64 s[{MT[1]}:{MT[1]+1}], -1, 0
    s_cmp_eq_u32 s{sTG}, 2
    s_cselect_b64 s[{MT[2]}:{MT[2]+1}], -1, 0
    s_cmp_eq_u32 s{sTG}, 3
    s_cselect_b64 s[{MT[3]}:{MT[3]+1}], -1, 0
    s_lshl_b32 s{sT2}, s{sPAR}, 4
    v_add_u32 v5, s{sT2}, v5
    v_mul_u32_u24 v5, 56, v5
    v_add_u32 v{vCT}, {L_CT}, v5
    v_mov_b32 v{T[0]}, 0x3f803f80
    v_mov_b32 v{T[1]}, 0x3f803f80
    v_mov_b32 v{T[2]}, 0x3f803f80
    v_mov_b32 v{T[3]}, 0x3f803f80""")
    if cfg.stamps:
        e.I(f"s_lshl_b32 s{sSTO}, s2, 3\ns_add_u32 s{sSTO}, s{sSTO}, s{sW}\ns_lshl_b32 s{sSTO}, s{sSTO}, 6\ns_add_u32 s{sSTO}, s{sSTO}, {WS_STAMP}")
    e.I(f"""s_mul_i32 s{sSB0}, s{sS}, 18
    s_mul_i32 s{sT2}, s{sCG}, 5
    s_add_u32 s{sSB0}, s{sSB0}, s{sT2}
    s_and_b32 s{sIDX}, s{sM}, 7""")

def touches(e, cfg, nsb):
    if not cfg.touch: return
    L = vAD
    t = T[6]
    e.I(f"""v_bfe_u32 v{t}, v{vST}, 7, 3
    v_mul_u32_u24 v{t}, 9216, v{t}
    v_bfe_u32 v{T[7]}, v{vST}, 4, 3
    v_cmp_gt_u32 vcc, {nsb}, v{T[7]}
    v_lshl_add_u32 v{t}, v{T[7]}, 7, v{t}
    v_mov_b32 v{T[7]}, {OOB}
    s_and_b32 s{sT2}, s{sM}, 7
    v_cndmask_b32 v{t}, v{T[7]}, v{t}, vcc
    s_mul_i32 s{sT2}, s{sT2}, 72
    s_mul_i32 s{sT3}, s{sTG}, 18
    s_add_u32 s{sT2}, s{sT2}, s{sT3}
    s_mul_i32 s{sT2}, s{sT2}, 9216
    s_lshl_b32 s{sT3}, s{sSB0}, 7
    s_add_u32 s{sT2}, s{sT2}, s{sT3}""")
    for i in range(3):
        e.vm(f"buffer_load_dword v{vDUM}, v{t}, {srd(SWW)}, s{sT2} offen")
        if i < 2: e.I(f"s_add_u32 s{sT2}, s{sT2}, {8*9216}")

def setup_pf(e):
    e.I(f"""s_cmp_eq_u32 s{sW}, 6
    s_cselect_b32 s{SPF}, s42, s44
    s_cselect_b32 s{SPF+1}, s43, s45
    s_cmp_lt_u32 s{sW}, 6
    s_cselect_b32 s{SPF}, s56, s{SPF}
    s_cselect_b32 s{SPF+1}, s57, s{SPF+1}
    s_mov_b32 s{SPF+2}, {576*1152}
    s_cselect_b32 s{SPF+2}, {4608*1152}, s{SPF+2}
    s_mov_b32 s{SPF+3}, 0x20000
    s_mul_i32 s{sT2}, s{sS}, {1152*1152}
    s_mul_i32 s{sT3}, s{sSLOT}, 41472
    s_add_u32 s{sT2}, s{sT2}, s{sT3}
    s_lshl_b32 s{sT3}, s{sW}, 13
    s_add_u32 s{sPFO}, s{sT2}, s{sT3}
    s_and_b32 s{sT2}, s2, 3
    s_mul_i32 s{sT2}, s{sT2}, 165888
    s_mul_i32 s{sT3}, s{sSLOT}, 5184
    s_add_u32 s{sT2}, s{sT2}, s{sT3}
    s_cmp_lt_u32 s{sW}, 6
    s_cselect_b32 s{sPFO}, s{sPFO}, s{sT2}""")

SUMR = [ACC(0, 0, 0, 0), ACC(0, 0, 0, 1)]
GRM = [ACC(0, 0, 1, 0), ACC(0, 0, 1, 1)]

def x_groups(e, cfg, typ, mid=None):
    LEAD = 18 - cfg.B
    dma_slot(e, typ, 0, sCUR); dma_slot(e, typ, 1, sCUR)
    nslot = 2
    if mid: mid(e)
    for g in range(3):
        e.wait(vm=("x", 3*g + 2), lg="all")
        e.I("s_barrier")
        lim = min(LEAD, 2 + 6*g)
        while nslot < lim: dma_slot(e, typ, nslot, sCUR); nslot += 1
        for s_ in range(6*g, 6*g + 6):
            for a in range(2):
                off = 16384*((s_ >> 1) - 3*g + 1) + 2048*a
                e.ds(f"ds_read_b128 {v(X(s_,a),4)}, v{KP[s_ & 1]} offset:{off}", ("xf", s_, a))
        if g < 2:
            e.I(f"v_add_u32 v{KP[0]}, 49152, v{KP[0]}\nv_add_u32 v{KP[1]}, 49152, v{KP[1]}")
        for s_ in range(6*g, 6*g + 6):
            for a in range(2):
                e.wait(lg=("xf", s_, a))
                c = lambda r: "0" if s_ == 0 else v(r, 4)
                e.I(f"v_mfma_f32_16x16x32_bf16 {v(SUMR[a],4)}, {v(T[0],4)}, {v(X(s_,a),4)}, {c(SUMR[a])}")
                e.I(f"v_mfma_f32_16x16x32_bf16 {v(GRM[a],4)}, {v(X(s_,a),4)}, {v(X(s_,a),4)}, {c(GRM[a])}")
    e.wait(lg="all")
    e.I("s_barrier")
    while nslot < LEAD: dma_slot(e, typ, nslot, sCUR); nslot += 1

def stats(e, cfg, negm, nm):
    e.I("s_nop 7")
    mean = [T[4], T[5]]
    for a in range(2):
        e.I(f"v_mul_f32 v{mean[a]}, {fl(1.0/576)}, v{SUMR[a]}")
    for a in range(2):
        bf16r(e, negm[a], mean[a])
    t = T[6]
    e.I(f"""v_bfe_u32 v{t}, v{vST}, 4, 2
    v_cmp_eq_u32 s[32:33], 1, v{t}
    v_cmp_eq_u32 s[34:35], 2, v{t}
    v_cmp_eq_u32 s[36:37], 3, v{t}
    v_bfe_u32 v{t}, v{vST}, 4, 4
    v_bfe_u32 v{T[7]}, v{vST}, 6, 2
    v_lshlrev_b32 v{t}, 2, v{t}
    v_lshl_add_u32 v{t}, v{T[7]}, 6, v{t}""")
    for a in range(2):
        g = GRM[a]
        e.I(f"""v_cndmask_b32_e64 v{g}, v{g}, v{g+1}, s[32:33]
        v_cndmask_b32_e64 v{g}, v{g}, v{g+2}, s[34:35]
        v_cndmask_b32_e64 v{g}, v{g}, v{g+3}, s[36:37]""")
    for a in range(2):
        e.ds(f"ds_bpermute_b32 v{GRM[a]+1}, v{t}, v{GRM[a]}", ("bp", a))
    for a in range(2):
        e.I(f"v_mul_f32 v{mean[a]}, v{mean[a]}, v{mean[a]}")
    e.wait(lg=("bp", 1))
    for a in range(2):
        g = GRM[a] + 1
        e.I(f"s_mov_b32 s{sT3}, {fl(1.0/576)}\nv_fma_f32 v{g}, v{g}, s{sT3}, -v{mean[a]}")
        e.I(f"v_max_f32 v{g}, 0, v{g}")
        bf16r(e, g, g)
        e.I(f"v_add_f32 v{g}, {fl(1e-5)}, v{g}")
        bf16r(e, g, g)
        e.I(f"v_sqrt_f32 v{g}, v{g}\ns_nop 0")
        bf16r(e, g, g)
        e.I(f"v_rcp_f32 v{g}, v{g}\nv_mov_b32 v{g-1}, v{negm[a]}")
        e.I(f"v_mul_f32 v{C1[a]}, {fl(-LOG2E)}, v{g}\nv_mul_f32 v{C2[a]}, v{g}, v{g}")
        e.I(f"v_xor_b32 v{negm[a]}, 0x80000000, v{negm[a]}")
    for it in rs_col_addr(T[4], T[5]): it(e)
    for a in range(2):
        e.ds(f"ds_write_b32 v{T[4]}, v{GRM[a]+1} offset:{16*a}", "rsw")
    e.I(f"""s_or_b32 s{sT2}, s{sS}, s{sCG}
    s_or_b32 s{sT2}, s{sT2}, s{sPAR}
    s_cmp_lg_u32 s{sT2}, 0
    s_cbranch_scc1 L_nostat{nm}
    s_lshl_b32 s{sT2}, s{sM}, 10
    s_add_u32 s{sT2}, s{sT2}, {WS_STATS - 2*L_RS}
    v_lshlrev_b32 v{T[4]}, 1, v{T[4]}
    buffer_store_dwordx2 v[{GRM[0]}:{GRM[0]+1}], v{T[4]}, {srd(SWS)}, s{sT2} offen
    buffer_store_dwordx2 v[{GRM[1]}:{GRM[1]+1}], v{T[4]}, {srd(SWS)}, s{sT2} offen offset:32
    L_nostat{nm}:""")

def start_phase0(e, cfg, typ, negm):
    hi = cfg.B | (1 if typ == "S" else 0)
    for it in conv_items(0, negm): it(e)
    e.wait(vm=("slot", 1))
    e.I("s_barrier")
    for i, (b, mat) in enumerate([(0, 0), (0, 1), (1, 0), (1, 1)]):
        read_frag(e, typ, 0, b, mat, i, ("f", i))

def conv_side(negm):
    return {s_: conv_items(s_ + 1, negm) for s_ in range(17)}

def adv_sb(e, n, last=False):
    pass

def set_f(e, dst, n):
    e.I(f"s_add_u32 s{dst}, s{sSB0}, s{sIDX}\ns_lshl_b32 s{dst}, s{dst}, 7\ns_add_u32 s{sIDX}, s{sIDX}, 1\ns_cmp_eq_u32 s{sIDX}, {n}\ns_cselect_b32 s{sIDX}, 0, s{sIDX}")
def set_hst_f(e, src):
    e.I(f"s_mul_i32 s{sHST}, s{sM}, {144*8192}\ns_lshl_b32 s{sT2}, s{src}, 7\ns_add_u32 s{sHST}, s{sHST}, s{sT2}")

def gen_ka(cfg):
    e = Em()
    prologue_common(e, cfg)
    e.I(f"s_cmp_eq_u32 s{sCG}, 3\ns_cbranch_scc1 LA_M")
    head = e
    traces = {}
    f = head.fork()
    negm = [KP[0], KP[1]]
    if cfg.rot:
        f.I(f"s_cmp_ge_u32 s{sIDX}, 5\ns_cselect_b32 s{sT2}, 5, 0\ns_sub_u32 s{sIDX}, s{sIDX}, s{sT2}")
    else: f.I(f"s_mov_b32 s{sIDX}, 0")
    set_f(f, sCUR, 5); set_f(f, sNXT, 5)
    stamp(f, cfg, 0)
    x_groups(f, cfg, "F", mid=setup_pf)
    stamp(f, cfg, 1)
    touches(f, cfg, 5)
    stats(f, cfg, negm, 'F')
    start_phase0(f, cfg, "F", negm)
    stamp(f, cfg, 2)
    phase(f, cfg, "F", 0, conv_side(negm), "F")
    f.I(f"s_mov_b32 s{sCNT}, 0\ns_add_u32 s{sPFO}, s{sPFO}, {OOB}")
    stamp(f, cfg, 3)
    def fa(e):
        set_hst_f(e, sCUR); e.I(f"s_mov_b32 s{sCUR}, s{sNXT}"); set_f(e, sNXT, 5)
        phase(e, cfg, "F", 1, spread(act_items(0)[:], 0, 12), "F")
        set_hst_f(e, sCUR); e.I(f"s_mov_b32 s{sCUR}, s{sNXT}"); set_f(e, sNXT, 5)
        e.I(f"s_cmp_eq_u32 s{sCNT}, 0\ns_cselect_b32 s{sNXT}, s{sNXT}, {OOB}")
        side = spread(act_items(1), 0, 12)
        if cfg.pf: side = merge({0: pf_items()}, side)
        phase(e, cfg, "F", 0, side, "F")
        e.I(f"s_sub_u32 s{sPFO}, s{sPFO}, {OOB}")
    b1 = f.fork(); fa(b1)
    b2 = b1.fork(); fa(b2)
    assert b1.lines == b2.lines, "loop body mismatch F"
    tail = b2.fork()
    stamp(tail, cfg, 4)
    set_hst_f(tail, sCUR)
    tail.I("s_nop 7")
    for it in act_items(0): it(tail)
    stamp(tail, cfg, 5)
    loopctl = [f"s_add_u32 s{sCNT}, s{sCNT}, 1", f"s_cmp_lt_u32 s{sCNT}, 2", "s_cbranch_scc1 LA_F1"]
    textF = f.lines + ["LA_F1:"] + b1.lines + loopctl + tail.lines + ["s_endpgm"]
    traces["F"] = head.lines + f.lines + b1.lines + loopctl + b2.lines + loopctl + tail.lines
    m = head.fork()
    CTR = [ACC(1, 0, 0, 0) + i for i in range(32)]
    m.I(f"""s_mul_i32 s{sCUR}, s{sS}, {144*1152}
    s_mul_i32 s{sT2}, s{sS}, 288
    v_lshl_add_u32 v{CTR[20]}, v0, 1, s{sT2}
    s_mov_b32 s{SPF}, s34
    s_mov_b32 s{SPF+1}, s35
    s_mov_b32 s{SPF+2}, 1152
    s_mov_b32 s{SPF+3}, 0x20000""")
    m.vm(f"buffer_load_ushort v{CTR[16]}, v{CTR[20]}, {srd(SPF)}, 0 offen", "p0")
    m.I(f"s_mov_b32 s{SPF}, s36\ns_mov_b32 s{SPF+1}, s37")
    m.vm(f"buffer_load_ushort v{CTR[17]}, v{CTR[20]}, {srd(SPF)}, 0 offen", "p1")
    m.I(f"s_mov_b32 s{SPF}, s46\ns_mov_b32 s{SPF+1}, s47")
    m.vm(f"buffer_load_ushort v{CTR[18]}, v{CTR[20]}, {srd(SPF)}, 0 offen", "p2")
    m.I(f"v_mul_u32_u24 v{CTR[21]}, 56, v0\nv_add_u32 v{CTR[21]}, {L_CT}, v{CTR[21]}\ns_movk_i32 s{sT2}, 144\nv_cmp_gt_u32 s[96:97], s{sT2}, v0")
    if cfg.rot:
        m.I(f"s_cmp_ge_u32 s{sIDX}, 6\ns_cselect_b32 s{sT2}, 6, 0\ns_sub_u32 s{sIDX}, s{sIDX}, s{sT2}\ns_cmp_ge_u32 s{sIDX}, 3\ns_cselect_b32 s{sT2}, 3, 0\ns_sub_u32 s{sIDX}, s{sIDX}, s{sT2}")
    else: m.I(f"s_mov_b32 s{sIDX}, 0")
    set_f(m, sNXT, 3)
    stamp(m, cfg, 0)
    x_groups(m, cfg, "S")
    stamp(m, cfg, 1)
    if cfg.touch:
        m.I(f"""s_cmp_eq_u32 s{sPAR}, 0
        s_cselect_b32 s{SPF}, s38, s40
        s_cselect_b32 s{SPF+1}, s39, s41
        s_mov_b32 s{SPF+2}, {576*1152}
        v_lshlrev_b32 v{T[7]}, 3, v{vST}
        v_and_b32 v{T[7]}, 0x1f80, v{T[7]}
        s_and_b32 s{sT2}, s{sM}, 7
        s_mul_i32 s{sT2}, s{sT2}, 20736
        s_add_u32 s{sT2}, s{sT2}, s{sCUR}
        s_lshl_b32 s{sT3}, s{sTG}, 13
        s_add_u32 s{sT2}, s{sT2}, s{sT3}""")
        m.vm(f"buffer_load_dword v{vDUM}, v{T[7]}, {srd(SPF)}, s{sT2} offen")
    touches(m, cfg, 3)
    setup_pf(m)
    c = CTR
    LRE, LIM, LDT, ZR, ZB = c[16], c[17], c[18], c[19], c[20]
    t0, t1, t2, t3 = c[22], c[23], c[24], c[25]
    m.wait(vm="p2")
    m.I(f"""v_lshlrev_b32 v{LRE}, 16, v{LRE}
    v_lshlrev_b32 v{LIM}, 16, v{LIM}
    v_lshlrev_b32 v{LDT}, 16, v{LDT}
    v_mul_f32 v{LDT}, {fl(LOG2E)}, v{LDT}
    v_exp_f32 v{LDT}, v{LDT}
    s_nop 0""")
    bf16r(m, LDT, LDT)
    m.I(f"""v_mul_f32 v{ZR}, v{LDT}, v{LRE}
    v_mul_f32 v{ZB}, v{LDT}, v{LIM}
    v_mul_f32 v{ZR}, {fl(LOG2E)}, v{ZR}
    v_mul_f32 v{ZB}, {fl(1/(2*math.pi))}, v{ZB}""")
    def power(n, dr, di):
        m.I(f"""v_mul_f32 v{t0}, {fl(n)}, v{ZR}
        v_mul_f32 v{t1}, {fl(n)}, v{ZB}
        v_exp_f32 v{t0}, v{t0}
        v_fract_f32 v{t1}, v{t1}
        v_cos_f32 v{dr}, v{t1}
        v_sin_f32 v{di}, v{t1}
        s_nop 0
        v_mul_f32 v{dr}, v{dr}, v{t0}
        v_mul_f32_e64 v{di}, -v{di}, v{t0}""")
    power(32.0, c[4], c[5]); power(8.0, c[8], c[9]); power(16.0, c[10], c[11]); power(24.0, c[12], c[13]); power(1.0, c[2], c[3])
    m.I(f"""v_mov_b32 v{c[6]}, 1.0
    v_mov_b32 v{c[7]}, 0
    v_cos_f32 v{t2}, v{t1}
    v_mul_f32 v{t3}, 0.5, v{ZB}
    v_fract_f32 v{t3}, v{t3}
    v_sin_f32 v{t3}, v{t3}
    v_add_f32 v{t0}, -1.0, v{t0}
    v_mul_f32 v{t0}, v{t0}, v{t2}
    v_mul_f32 v{t3}, v{t3}, v{t3}
    v_fma_f32 v{t0}, -2.0, v{t3}, v{t0}
    v_mul_f32 v{t1}, v{LRE}, v{LRE}
    v_fmac_f32 v{t1}, v{LIM}, v{LIM}
    v_rcp_f32 v{t1}, v{t1}
    v_mul_f32 v{c[0]}, v{t0}, v{LRE}
    v_fma_f32 v{c[0]}, -v{c[3]}, v{LIM}, v{c[0]}
    v_mul_f32 v{c[1]}, v{t0}, v{LIM}
    v_fmac_f32 v{c[1]}, v{c[3]}, v{LRE}
    v_add_f32 v{t1}, v{t1}, v{t1}
    v_mul_f32 v{c[0]}, v{c[0]}, v{t1}
    v_mul_f32 v{c[1]}, v{c[1]}, v{t1}
    s_and_saveexec_b64 s[98:99], s[96:97]
    s_cbranch_execz L_noct""")
    for k in range(7):
        m.I(f"ds_write_b64 v{c[21]}, v[{c[2*k]}:{c[2*k]+1}] offset:{8*k}")
    m.I("s_waitcnt lgkmcnt(0)\nL_noct:\ns_mov_b64 exec, -1")
    stats(m, cfg, negm, 'M')
    start_phase0(m, cfg, "S", negm)
    stamp(m, cfg, 2)
    phase(m, cfg, "S", 0, conv_side(negm), "F")
    stamp(m, cfg, 3)
    m.I(f"""s_mul_i32 s{sHSN}, s{sM}, 36
    s_mul_i32 s{sT2}, s{sS}, 9
    s_add_u32 s{sHSN}, s{sHSN}, s{sT2}
    s_lshl_b32 s{sHSN}, s{sHSN}, 13
    s_add_u32 s{sHSN}, s{sHSN}, {WS_HS}
    s_mul_i32 s{sAGG}, s{sM}, {576*8}
    s_mul_i32 s{sT2}, s{sS}, {144*8}
    s_add_u32 s{sAGG}, s{sAGG}, s{sT2}
    s_mul_i32 s{sT2}, s{sPAR}, {4096-128}
    s_sub_u32 s{sAGG}, s{sAGG}, s{sT2}
    s_add_u32 s{sAGG}, s{sAGG}, {WS_SAGG}
    s_mul_i32 s{sSLOT}, s{sS}, {144*1152}
    s_mov_b32 s{sCNT}, 0""")
    def m1(e):
        e.I(f"""s_mov_b32 s{sHST}, s{sHSN}
        s_mov_b32 s{sCUR}, s{sNXT}
        s_add_u32 s{sSLOT}, s{sSLOT}, {64*1152}
        s_lshl_b32 s{sT2}, s{sCNT}, 1
        s_cmp_ge_u32 s{sW}, s{sT2}
        s_cselect_b32 s{sT2}, s{sCNT}, 0
        s_lshl_b32 s{sT2}, s{sT2}, 30
        s_add_u32 s{sNXT}, s{sSLOT}, s{sT2}""")
        pre, post = spost_items(0, 2)
        B2 = 6
        phase(e, cfg, "F", 1, merge(spread(pre, 0, B2), spread(post, B2, 13 if False else 17)), "S")
        e.I(f"s_add_u32 s{sHSN}, s{sHSN}, {4*8192}\ns_add_u32 s{sAGG}, s{sAGG}, {64*8}")
    lab0 = _lbl[0]
    a1 = m.fork(); m1(a1)
    m2 = a1.fork()
    set_hst_f(m2, sCUR); m2.I(f"s_mov_b32 s{sCUR}, s{sNXT}"); set_f(m2, sNXT, 3)
    phase(m2, cfg, "S", 0, spread(reload_c_items() + act_items(1), 0, 12), "F")
    m2.I(f"s_mov_b32 s{sCNT}, 1\ns_branch LA_M1")
    _lbl[0] = lab0
    a2 = m2.fork(); m1(a2)
    assert a1.lines == a2.lines, "loop body mismatch M1"
    q = a2.fork()
    set_hst_f(q, sCUR); q.I(f"s_mov_b32 s{sCUR}, s{sNXT}"); set_f(q, sNXT, 3)
    q.I(f"s_cmp_lg_u32 s{sPAR}, 0\ns_cbranch_scc1 LA_Q1")
    q0 = q.fork(); r0 = phase(q0, cfg, "Q0", 0, spread(reload_c_items() + act_items(1), 0, 12), "F")
    q1 = q.fork(); r1 = phase(q1, cfg, "Q1", 0, spread(reload_c_items() + act_items(1), 0, 12), "F")
    q0.vmq = [t for t in q0.vmq if t]; q1.vmq = [t for t in q1.vmq if t]
    assert r0 == r1 and q0.vmq == q1.vmq, (r0, r1, q0.vmq, q1.vmq)
    assert q0.lgq[-8:] == q1.lgq[-8:]
    m5 = q0.fork()
    m5.lgq = q0.lgq[-8:]
    m5.I(f"""s_lshl_b32 s{sT2}, s{sPAR}, 30
    s_add_u32 s{sHST}, s{sHSN}, s{sT2}
    s_add_u32 s{sAGG}, s{sAGG}, s{sT2}
    s_mov_b32 s{sCUR}, s{sNXT}""")
    pre, post = spost_items(0, 1)
    side = merge(spread(pre, 0, 6), spread(post, 6, 14), spread(reload_c_items(), 15, 17))
    if cfg.pf: side = merge({0: pf_items()}, side)
    phase(m5, cfg, "F", 1, side, None, rot0=r0)
    stamp(m5, cfg, 4)
    set_hst_f(m5, sCUR)
    m5.I("s_nop 7")
    for it in act_items(1): it(m5)
    stamp(m5, cfg, 5)
    chk = [f"s_cmp_lg_u32 s{sCNT}, 0", "s_cbranch_scc1 LA_M4"]
    textM = (["LA_M:"] + m.lines + ["LA_M1:"] + a1.lines + chk + m2.lines + ["LA_M4:"] + q.lines + q0.lines + ["s_branch LA_M5", "LA_Q1:"] + q1.lines
             + ["LA_M5:"] + m5.lines + ["LA_end:", "s_endpgm"])
    for nm, qq in (("M0", q0), ("M1", q1)):
        traces[nm] = head.lines + m.lines + a1.lines + chk + m2.lines + a2.lines + chk + q.lines + qq.lines + m5.lines
    errs = []
    for nm, tr in traces.items(): errs += check_hazards(tr, "KA-" + nm)
    return head.lines + textF + textM, errs
```

```python
from asmfw import *
from ka import (WS_HF, WS_HS, WS_SAGG, WS_STATS, WS_PART, WS_Y, WS_STAMP, WS_SIZE, OOB, LOG2E, fl, srd, V, DS, VM, WL, bf16r)
import math

sW, sTG, sKH, sM, sS, sJ = 3, 4, 5, 6, 7, 64
SWT, SWS, SPR = 8, 12, 16
sT, sT2, sT3, sWB, sHB, sM0, sE0, sE1, sR5a, sR5b = 65, 66, 67, 68, 69, 70, 71, 72, 73, 74
sSTMP, sSTO = 92, 94

def stamp(e, cfg, idx, tmp):
    if not cfg.stamps: return
    e.I(f"s_memtime s[{sSTMP}:{sSTMP+1}]")
    e.I("s_waitcnt lgkmcnt(0)"); e.lgq.clear()
    e.I(f"v_mov_b32 v{tmp}, s{sSTMP}")
    e.vm(f"buffer_store_dword v{tmp}, off, {srd(SWS)}, s{sSTO} offset:{idx*4}")

def head(e, cfg):
    e.I(f"""s_cmp_ge_u32 s2, 256
    s_cbranch_scc1 LB_end
    s_load_dwordx16 s[32:47], s[0:1], 0
    s_load_dwordx16 s[48:63], s[0:1], 64
    v_lshrrev_b32 v1, 6, v0
    v_and_b32 v200, 63, v0
    s_and_b32 s{sT2}, s2, 7
    v_readfirstlane_b32 s{sW}, v1
    s_lshr_b32 s{sT3}, s2, 3
    s_mov_b32 s{sE0}, 0x00003f80
    s_mov_b32 s{sE1}, 0x3f800000
    s_and_b32 s{sTG}, s{sW}, 3
    s_lshr_b32 s{sKH}, s{sW}, 2
    s_lshl_b32 s{sT}, s{sTG}, 11
    s_lshl_b32 s{sM0}, s{sKH}, 13
    s_add_u32 s{sT}, s{sT}, s{sM0}
    v_lshl_add_u32 v201, v200, 4, s{sT}
    s_waitcnt lgkmcnt(0)
    s_mov_b32 s{SWS}, s62
    s_mov_b32 s{SWS+1}, s63
    s_mov_b32 s{SWS+2}, {WS_SIZE}
    s_mov_b32 s{SWS+3}, 0x20000""")
    if cfg.stamps:
        e.I(f"s_lshl_b32 s{sSTO}, s2, 3\ns_add_u32 s{sSTO}, s{sSTO}, s{sW}\ns_lshl_b32 s{sSTO}, s{sSTO}, 6\ns_add_u32 s{sSTO}, s{sSTO}, {WS_STAMP + 0x40000}")
    e.I(f"s_cmp_ge_u32 s{sT3}, 24\ns_cbranch_scc1 LB_S")
L = 200; vH = 201

def gen_ffn(e, cfg):
    B = cfg.BB; LEAD = 6 - B; HD = cfg.HD
    ACC = lambda a, cb: 4*(12*a + cb)
    WF = lambda i: 96 + 4*(i % 6)
    HF = lambda t, a: 120 + 8*(t % 6) + 4*a
    RB = lambda th, c: 168 + 4*th + c
    vD = 180
    e.I(f"""s_lshr_b32 s{sS}, s{sT2}, 1
    s_and_b32 s{sM}, s{sT2}, 1
    s_lshl_b32 s{sM}, s{sM}, 3
    s_mul_i32 s{sT}, s{sT3}, 43
    s_lshr_b32 s{sT}, s{sT}, 7
    s_add_u32 s{sM}, s{sM}, s{sT}
    s_mul_i32 s{sT}, s{sT}, 3
    s_sub_u32 s{sJ}, s{sT3}, s{sT}
    s_mov_b32 s{SWT}, s56
    s_mov_b32 s{SWT+1}, s57
    s_mov_b32 s{SWT+2}, {4608*1152}
    s_mov_b32 s{SWT+3}, 0x20000
    s_mul_i32 s{sWB}, s{sS}, {1152*1152}
    s_mul_i32 s{sT}, s{sJ}, 384
    s_add_u32 s{sWB}, s{sWB}, s{sT}
    s_mul_i32 s{sHB}, s{sM}, 144
    s_mul_i32 s{sT}, s{sS}, 36
    s_add_u32 s{sHB}, s{sHB}, s{sT}
    s_lshl_b32 s{sHB}, s{sHB}, 13
    s_mul_i32 s{sM0}, s{sKH}, 12288
    s_lshl_b32 s{sT}, s{sTG}, 10
    s_add_u32 s{sM0}, s{sM0}, s{sT}
    v_lshrrev_b32 v2, 3, v{L}
    s_lshl_b32 s{sT}, s{sW}, 3
    v_add_u32 v2, s{sT}, v2
    v_mul_u32_u24 v2, 1152, v2
    v_lshrrev_b32 v3, 4, v{L}
    v_bfe_u32 v4, v{L}, 1, 2
    v_xor_b32 v4, v4, v3
    v_lshl_add_u32 v2, v4, 5, v2
    v_and_b32 v4, 1, v{L}
    v_lshl_add_u32 v{vD}, v4, 4, v2""")
    def dma(t):
        e.I(f"s_add_u32 s{sT}, s{sWB}, {t*64*1152}")
        for i in range(3):
            e.I(f"s_add_u32 m0, s{sM0}, {(t % 6)*24576 + i*(4096-128)}")
            if i: e.I("s_nop 0") if False else None
            yield lambda i=i, t=t: e.vm(f"buffer_load_dwordx4 v{vD}, {srd(SWT)}, s{sT} offen offset:{128*i} lds", ("w", t))
    def dma_items(t):
        its = []
        for i in range(3):
            def f(e, i=i):
                e.I(f"s_add_u32 m0, s{sM0}, {(t % 6)*24576 + i*(4096-128)}")
                e.I(f"s_add_u32 s{sT}, s{sWB}, {t*64*1152}")
                e.vm(f"buffer_load_dwordx4 v{vD}, {srd(SWT)}, s{sT} offen offset:{128*i} lds", ("w", t))
            its.append(f)
        return its
    def h_items(t):
        def f(e):
            e.I(f"s_add_u32 s{sT2}, s{sHB}, {t*16384}")
            e.vm(f"buffer_load_dwordx4 {v(HF(t,0),4)}, v{vH}, {srd(SWS)}, s{sT2} offen")
            e.vm(f"buffer_load_dwordx4 {v(HF(t,1),4)}, v{vH}, {srd(SWS)}, s{sT2} offen offset:1024", ("h", t))
        return [f]
    stamp(e, cfg, 0, 202)
    for t in range(max(LEAD, HD)):
        if t < LEAD:
            for f in dma_items(t): f(e)
        if t < HD:
            for f in h_items(t): f(e)
    e.I(f"""v_bfe_u32 v4, v{L}, 2, 2
    v_lshl_add_u32 v5, v3, 2, v4
    v_lshlrev_b32 v5, 7, v5
    v_and_b32 v6, 3, v{L}
    v_lshl_add_u32 v5, v6, 3, v5
    s_mul_i32 s{sT3}, s{sKH}, 12288
    v_add_u32 v5, s{sT3}, v5
    v_lshrrev_b32 v4, 1, v4
    v_and_b32 v6, 1, v3
    v_lshl_or_b32 v4, v6, 1, v4
    v_lshl_add_u32 v{RB(0,0)}, v4, 5, v5""")
    for c in range(1, 4): e.I(f"v_xor_b32 v{RB(0,c)}, {32*c}, v{RB(0,0)}")
    for th in (1, 2):
        for c in range(4): e.I(f"v_add_u32 v{RB(th,c)}, {49152*th}, v{RB(0,c)}")
    allf = [(u, cb) for u in range(18) for cb in range(12)]
    st = dict(ri=0)
    def issue_read():
        n = st["ri"]; u, cb = allf[n]; st["ri"] += 1
        sl = u % 6; off = (sl & 1)*24576 + (cb >> 2)*4096; r = WF(n); b = RB(sl >> 1, cb & 3)
        e.ds(f"ds_read_b64_tr_b16 v[{r}:{r+1}], v{b} offset:{off}")
        e.ds(f"ds_read_b64_tr_b16 v[{r+2}:{r+3}], v{b} offset:{off+2048}", ("f", n))
    e.wait(vm=("w", 0)); e.I("s_barrier")
    stamp(e, cfg, 1, 202)
    for _ in range(4): issue_read()
    ci = 0
    for u in range(18):
        if u % B == 0:
            e.wait(vm=[("w", min(u + B, 17)), ("h", u)]); e.I("s_barrier")
        else:
            e.wait(vm=("h", u))
        items = []
        if u + HD < 18: items += h_items(u + HD)
        if u + LEAD < 18: items += dma_items(u + LEAD)
        pos = {1 + 3*i: it for i, it in enumerate(items)}
        for cb in range(12):
            e.wait(lg=("f", ci))
            for a in range(2):
                d = ACC(a, cb); c = "0" if u == 0 else v(d, 4)
                e.I(f"v_mfma_f32_16x16x32_bf16 {v(d,4)}, {v(WF(ci),4)}, {v(HF(u,a),4)}, {c}")
                if st["ri"] < len(allf) and st["ri"] - ci <= 4 and allf[st["ri"]][0] <= B*(u // B) + B: issue_read()
            if cb in pos: pos[cb](e)
            ci += 1
    stamp(e, cfg, 2, 202)
    e.I(f"""s_barrier
    s_mul_i32 s{sT}, s{sW}, 12288
    v_lshl_add_u32 v182, v{L}, 4, s{sT}
    s_xor_b32 s{sT}, s{sW}, 4
    s_mul_i32 s{sT}, s{sT}, 12288
    v_lshl_add_u32 v183, v{L}, 4, s{sT}
    s_lshl_b32 s{sT}, s{sS}, 4
    s_add_u32 s{sT}, s{sT}, s{sM}
    s_mul_i32 s{sT}, s{sT}, 3
    s_add_u32 s{sT}, s{sT}, s{sJ}
    s_lshl_b32 s{sT}, s{sT}, 2
    s_add_u32 s{sT}, s{sT}, s{sTG}
    s_mul_i32 s{sT}, s{sT}, 12288
    s_mul_i32 s{sT2}, s{sKH}, 3072
    s_add_u32 s{sT}, s{sT}, s{sT2}
    s_add_u32 s{sT}, s{sT}, {WS_PART}
    s_add_u32 s{sT2}, s{sT}, 6144
    v_lshlrev_b32 v184, 4, v{L}
    s_cmp_lg_u32 s{sKH}, 0
    s_cbranch_scc1 LB_e1""")
    paths = []
    for kh in range(2):
        p = e.fork()
        keep = 6*kh; send = 6*(1 - kh)
        for a in range(2):
            for i in range(6): p.ds(f"ds_write_b128 v182, {v(ACC(a, send+i),4)} offset:{(a*6+i)*1024}")
        p.wait(lg="all"); p.I("s_barrier")
        for a in range(2):
            for i in range(6): p.ds(f"ds_read_b128 {v(ACC(a, send+i),4)}, v183 offset:{(a*6+i)*1024}", (a, i))
        for a in range(2):
            for cp in range(3):
                p.wait(lg=(a, 2*cp + 1))
                for k in range(2):
                    d = ACC(a, keep + 2*cp + k); sr = ACC(a, send + 2*cp + k)
                    for r in range(4): p.I(f"v_add_f32 v{d+r}, v{d+r}, v{sr+r}")
                d = ACC(a, keep + 2*cp)
                for k in range(4): p.I(f"v_cvt_pk_bf16_f32 v{d+k}, v{d+2*k}, v{d+2*k+1}")
                p.vm(f"buffer_store_dwordx4 {v(d,4)}, v184, {srd(SWS)}, s{sT2 if a else sT} offen offset:{cp*1024}")
        stamp(p, cfg, 3, 202)
        p.I("s_endpgm")
        paths.append(p)
    text = e.lines + paths[0].lines + ["LB_e1:"] + paths[1].lines
    return text, {"F0": e.lines + paths[0].lines, "F1": e.lines + paths[1].lines}

def gen_ssm(e, cfg):
    L_HT, L_KT = 110592, 147456
    ACC = lambda a, nb: 4*(9*a + nb)
    CF = lambda i: 72 + 4*(i % 6)
    HA = lambda a: 96 + 4*a
    HS = lambda t, ri: 104 + 8*(t % 3) + 4*ri
    vCB = [[128, 129], [130, 131]]
    vD, vHW, vHR, vKT, vN0 = 132, 133, 134, 135, 136
    AB, LL, HH = 138, 140, 142
    G = [(144, 145), (146, 147)]
    O = [148, 149, 150, 151]
    t0, t1, t2, t3 = 152, 153, 154, 155
    sJN = sJ
    e.I(f"""LB_S:
    s_and_b32 s{sJN}, s{sT2}, 3
    s_lshr_b32 s{sM}, s{sT2}, 2
    s_lshl_b32 s{sM}, s{sM}, 3
    s_add_u32 s{sM}, s{sM}, s{sT3}
    s_sub_u32 s{sM}, s{sM}, 24
    v_lshlrev_b32 v160, 2, v0
    v_lshlrev_b32 v161, 4, v0
    s_mov_b32 s{SPR}, s34
    s_mov_b32 s{SPR+1}, s35
    s_mov_b32 s{SPR+2}, 1152
    s_mov_b32 s{SPR+3}, 0x20000""")
    stamp(e, cfg, 0, 202)
    e.vm(f"buffer_load_dword v162, v160, {srd(SPR)}, 0 offen")
    e.I(f"s_mov_b32 s{SPR}, s36\ns_mov_b32 s{SPR+1}, s37")
    e.vm(f"buffer_load_dword v163, v160, {srd(SPR)}, 0 offen")
    e.I(f"s_mov_b32 s{SPR}, s46\ns_mov_b32 s{SPR+1}, s47")
    e.vm(f"buffer_load_dword v164, v160, {srd(SPR)}, 0 offen", "par")
    for i in range(15):
        e.I(f"""s_add_i32 s{sT}, s{sM}, {i-15}
        s_mul_i32 s{sT2}, s{sT}, 4608
        s_add_u32 s{sT2}, s{sT2}, {WS_SAGG}
        s_cmp_lt_i32 s{sT}, 0
        s_cselect_b32 s{sT2}, {OOB}, s{sT2}""")
        e.vm(f"buffer_load_dwordx4 {v(8+4*i,4)}, v161, {srd(SWS)}, s{sT2} offen", ("sg", i))
    e.I(f"""s_cmp_eq_u32 s{sKH}, 0
    s_cselect_b32 s{SWT}, s42, s44
    s_cselect_b32 s{SWT+1}, s43, s45
    s_mov_b32 s{SWT+2}, {576*1152}
    s_mov_b32 s{SWT+3}, 0x20000
    s_mul_i32 s{sWB}, s{sJN}, {144*1152}
    s_mul_i32 s{sHB}, s{sM}, {36*8192}
    s_add_u32 s{sHB}, s{sHB}, {WS_HS}
    s_mul_i32 s{sM0}, s{sKH}, 18432
    s_lshl_b32 s{sT}, s{sTG}, 10
    s_add_u32 s{sM0}, s{sM0}, s{sT}
    s_cmp_lt_u32 s{sTG}, 2
    s_cselect_b32 s{sR5a}, {4*36864}, 0
    s_cselect_b32 s{sR5b}, {4*4096}, 0
    s_add_u32 s{sR5a}, s{sR5a}, s{sWB}
    s_add_u32 s{sR5b}, s{sR5b}, s{sM0}
    v_lshrrev_b32 v2, 3, v{L}
    s_lshl_b32 s{sT}, s{sTG}, 3
    v_add_u32 v2, s{sT}, v2
    v_mul_u32_u24 v2, 1152, v2
    v_lshrrev_b32 v3, 4, v{L}
    s_and_b32 s{sT}, s{sTG}, 1
    s_lshl_b32 s{sT}, s{sT}, 2
    v_or_b32 v4, s{sT}, v3
    v_and_b32 v5, 7, v{L}
    v_xor_b32 v4, v4, v5
    v_lshl_add_u32 v{vD}, v4, 4, v2""")
    def c_items(D):
        its = []
        for i in range(5):
            def f(e, i=i):
                if i < 4:
                    e.I(f"s_add_u32 m0, s{sM0}, {(D % 3)*36864 + i*4096}\ns_add_u32 s{sT}, s{sWB}, {i*36864 + D*128}")
                else:
                    e.I(f"s_add_u32 m0, s{sR5b}, {(D % 3)*36864}\ns_add_u32 s{sT}, s{sR5a}, {D*128}")
                e.vm(f"buffer_load_dwordx4 v{vD}, {srd(SWT)}, s{sT} offen lds", ("c", D))
            its.append(f)
        return its
    def hs_items(t):
        def f(e):
            e.I(f"s_add_u32 s{sT2}, s{sHB}, {t*16384}")
            e.vm(f"buffer_load_dwordx4 {v(HS(t,0),4)}, v{vH}, {srd(SWS)}, s{sT2} offen")
            e.vm(f"buffer_load_dwordx4 {v(HS(t,1),4)}, v{vH}, {srd(SWS)}, s{sT2} offen offset:1024", ("h", t))
        return [f]
    for f in hs_items(0) + c_items(0) + hs_items(1) + c_items(1) + hs_items(2): f(e)
    e.I(f"""v_and_b32 v4, 15, v{L}
    v_lshrrev_b32 v5, 1, v4
    v_xor_b32 v5, v5, v3
    v_lshlrev_b32 v5, 4, v5
    v_lshl_add_u32 v5, v4, 7, v5
    s_mul_i32 s{sT}, s{sKH}, 18432
    v_add_u32 v{vCB[0][0]}, s{sT}, v5
    v_xor_b32 v{vCB[0][1]}, 64, v{vCB[0][0]}
    v_add_u32 v{vCB[1][0]}, {2*36864}, v{vCB[0][0]}
    v_add_u32 v{vCB[1][1]}, {2*36864}, v{vCB[0][1]}
    s_lshl_b32 s{sT}, s{sKH}, 4
    v_add_u32 v5, s{sT}, v4
    v_mul_u32_u24 v{vKT}, 24, v5
    v_add_u32 v{vKT}, {L_KT}, v{vKT}
    v_bfe_u32 v6, v4, 2, 1
    v_lshl_add_u32 v6, v6, 3, s{sT}
    v_bfe_u32 v7, v4, 3, 1
    v_lshl_add_u32 v6, v7, 2, v6
    v_and_b32 v7, 3, v4
    v_add_u32 v6, v6, v7
    v_mul_u32_u24 v6, 288, v6
    v_lshl_add_u32 v6, v3, 4, v6
    s_lshl_b32 s{sT}, s{sTG}, 6
    s_add_u32 s{sT}, s{sT}, {L_HT}
    v_add_u32 v{vHW}, s{sT}, v6
    v_lshrrev_b32 v6, 1, v3
    v_lshlrev_b32 v6, 4, v6
    v_and_b32 v7, 1, v3
    v_lshl_add_u32 v6, v7, 2, v6
    v_lshrrev_b32 v7, 2, v4
    v_add_u32 v6, v6, v7
    v_mul_u32_u24 v6, 288, v6
    v_and_b32 v7, 3, v4
    v_lshl_add_u32 v6, v7, 3, v6
    s_mul_i32 s{sT2}, s{sKH}, 9216
    s_add_u32 s{sT}, s{sT}, s{sT2}
    v_add_u32 v{vHR}, s{sT}, v6
    s_lshl_b32 s{sT}, s{sTG}, 5
    s_add_u32 s{sT}, s{sT}, 1
    v_lshl_add_u32 v6, v3, 3, s{sT}
    v_cvt_f32_u32 v{vN0}, v6""")
    e.wait(vm="par")
    for ch in range(2):
        K = 170 + 6*ch; P = 182 + 2*ch
        un = (lambda d, s_: f"v_lshlrev_b32 v{d}, 16, v{s_}") if ch == 0 else (lambda d, s_: f"v_and_b32 v{d}, 0xffff0000, v{s_}")
        e.I(un(t0, 164)); e.I(un(K, 162)); e.I(un(K+1, 163))
        e.I(f"v_mul_f32 v{t0}, {fl(LOG2E)}, v{t0}\nv_exp_f32 v{t0}, v{t0}\ns_nop 0")
        bf16r(e, t0, t0)
        e.I(f"""v_mul_f32 v{K}, v{t0}, v{K}
        v_mul_f32 v{K+1}, v{t0}, v{K+1}
        v_mul_f32 v{K}, {fl(LOG2E)}, v{K}
        v_mul_f32 v{K+1}, {fl(-1/(2*math.pi))}, v{K+1}""")
        for n, d in ((1.0, K+2), (128.0, P)):
            e.I(f"""v_mul_f32 v{t0}, {fl(n)}, v{K}
            v_mul_f32 v{t1}, {fl(n)}, v{K+1}
            v_exp_f32 v{t0}, v{t0}
            v_fract_f32 v{t1}, v{t1}
            v_cos_f32 v{d}, v{t1}
            v_sin_f32 v{d+1}, v{t1}
            s_nop 0
            v_mul_f32 v{d}, v{d}, v{t0}
            v_mul_f32 v{d+1}, v{d+1}, v{t0}""")
    for i in range(1, 15):
        e.wait(vm=("sg", i))
        for ch in range(2):
            P = 182 + 2*ch; d = 8 + 4*i + 2*ch; p = d - 4
            e.I(f"v_fmac_f32 v{d}, v{P}, v{p}\nv_fmac_f32 v{d+1}, v{P}, v{p+1}")
        for ch in range(2):
            P = 182 + 2*ch; d = 8 + 4*i + 2*ch; p = d - 4
            e.I(f"v_fma_f32 v{d}, -v{P+1}, v{p+1}, v{d}\nv_fmac_f32 v{d+1}, v{P+1}, v{p}")
    e.I(f"""v_mov_b32 v174, v64
    v_mov_b32 v175, v65
    v_mov_b32 v180, v66
    v_mov_b32 v181, v67
    v_mul_u32_u24 v160, 48, v0
    v_add_u32 v160, {L_KT}, v160
    s_movk_i32 s{sT}, 288
    v_cmp_gt_u32 vcc, s{sT}, v0
    s_and_saveexec_b64 s[96:97], vcc
    s_cbranch_execz LB_nokt
    ds_write_b64 v160, v[170:171]
    ds_write_b64 v160, v[172:173] offset:8
    ds_write_b64 v160, v[174:175] offset:16
    ds_write_b64 v160, v[176:177] offset:24
    ds_write_b64 v160, v[178:179] offset:32
    ds_write_b64 v160, v[180:181] offset:40
    s_waitcnt lgkmcnt(0)
    LB_nokt:
    s_mov_b64 exec, -1
    s_barrier""")
    def fix_items(t):
        it = [DS(f"ds_read_b64 v[{AB}:{AB+1}], v{vKT} offset:{t*768}"), DS(f"ds_read_b64 v[{LL}:{LL+1}], v{vKT} offset:{t*768+8}"),
              DS(f"ds_read_b64 v[{HH}:{HH+1}], v{vKT} offset:{t*768+16}", "kt"), WL("kt"),
              V(f"v_mul_f32 v{t0}, v{AB}, v{vN0}"), V(f"v_mul_f32 v{t1}, v{AB+1}, v{vN0}"), V(f"v_exp_f32 v{t0}, v{t0}"), V(f"v_fract_f32 v{t1}, v{t1}"),
              V(f"v_cos_f32 v{t2}, v{t1}"), V(f"v_sin_f32 v{t3}, v{t1}"), V(f"v_mul_f32 v{HH}, v{HH}, v{t0}"), V(f"v_mul_f32 v{HH+1}, v{HH+1}, v{t0}"),
              V(f"v_mul_f32 v{G[0][0]}, v{HH}, v{t2}"), V(f"v_mul_f32 v{G[0][1]}, v{HH}, v{t3}"),
              V(f"v_fma_f32 v{G[0][0]}, -v{HH+1}, v{t3}, v{G[0][0]}"), V(f"v_fmac_f32 v{G[0][1]}, v{HH+1}, v{t2}"),
              lambda e: e.wait(vm=("h", t))]
        R, Im = HS(t, 0), HS(t, 1)
        for j in range(8):
            g = G[j & 1]; n = G[(j + 1) & 1]; se = sE1 if (j & 1) else sE0
            it += [V(f"v_dot2_f32_bf16 v{O[j & 1]}, v{R + (j >> 1)}, s{se}, v{g[0]}"), V(f"v_dot2_f32_bf16 v{O[2 + (j & 1)]}, v{Im + (j >> 1)}, s{se}, v{g[1]}")]
            if j < 7:
                it += [V(f"v_mul_f32 v{n[0]}, v{LL}, v{g[0]}"), V(f"v_mul_f32 v{n[1]}, v{LL}, v{g[1]}"),
                       V(f"v_fma_f32 v{n[0]}, -v{LL+1}, v{g[1]}, v{n[0]}"), V(f"v_fmac_f32 v{n[1]}, v{LL+1}, v{g[0]}")]
            else: it += [V("s_nop 2")]
            if j & 1:
                it += [V(f"v_cvt_pk_bf16_f32 v{R + (j >> 1)}, v{O[0]}, v{O[1]}"), V(f"v_cvt_pk_bf16_f32 v{Im + (j >> 1)}, v{O[2]}, v{O[3]}")]
        it += [DS(f"ds_write_b128 v{vHW}, {v(R,4)} offset:{(t & 1)*18432}"), DS(f"ds_write_b128 v{vHW}, {v(Im,4)} offset:{(t & 1)*18432 + 9216}", "hw")]
        return it
    for it in fix_items(0): it(e)
    allf = [(u, nb) for u in range(18) for nb in range(9)]
    st = dict(ri=0)
    def issue_read():
        n = st["ri"]; u, nb = allf[n]; st["ri"] += 1
        sl = (u >> 1) % 3; r = CF(n)
        b = vCB[1 if sl == 2 else 0][u & 1]; off = (sl % 2 if sl < 2 else 0)*36864 + nb*2048
        e.ds(f"ds_read_b128 {v(r,4)}, v{b} offset:{off}", ("f", n))
    ci = 0
    stamp(e, cfg, 1, 202)
    for u in range(18):
        e.wait(vm=("c", min(u + 1, 17) >> 1), lg="hw"); e.I("s_barrier")
        for a in range(2):
            o = (u & 1)*18432 + a*32
            e.ds(f"ds_read_b64_tr_b16 v[{HA(a)}:{HA(a)+1}], v{vHR} offset:{o}")
            e.ds(f"ds_read_b64_tr_b16 v[{HA(a)+2}:{HA(a)+3}], v{vHR} offset:{o + 8*288}", ("ha", a))
        if u == 0:
            for _ in range(4): issue_read()
        items = []
        if u + 1 < 18: items += fix_items(u + 1)
        extra = []
        if u + 3 < 18: extra += hs_items(u + 3)
        if u % 2 == 0 and (u >> 1) + 2 < 9: extra += c_items((u >> 1) + 2)
        nhead = min(len(items), 16)
        for it in items[:nhead]: it(e)
        dist = interleave(18, items[nhead:]) if items[nhead:] else [[] for _ in range(18)]
        for nb in range(9):
            e.wait(lg=[("f", ci)] + ([("ha", 0)] if nb == 0 else []))
            for a in range(2):
                if nb == 0 and a == 1: e.wait(lg=("ha", 1))
                d = ACC(a, nb); c = "0" if u == 0 else v(d, 4)
                e.I(f"v_mfma_f32_16x16x32_bf16 {v(d,4)}, {v(HA(a),4)}, {v(CF(ci),4)}, {c}")
                if st["ri"] < len(allf) and st["ri"] - ci <= 4 and allf[st["ri"]][0] <= u + 1: issue_read()
                for it in dist[2*nb + a]: it(e)
            if nb < len(extra): extra[nb](e)
            ci += 1
    stamp(e, cfg, 2, 202)
    e.I(f"""s_barrier
    s_mul_i32 s{sT}, s{sW}, 9216
    v_lshl_add_u32 v182, v{L}, 4, s{sT}
    s_xor_b32 s{sT}, s{sW}, 4
    s_mul_i32 s{sT}, s{sT}, 9216
    v_lshl_add_u32 v183, v{L}, 4, s{sT}
    v_lshrrev_b32 v184, 4, v{L}
    v_mul_u32_u24 v184, {4*2304}, v184
    v_and_b32 v185, 15, v{L}
    v_lshl_add_u32 v184, v185, 2, v184
    v_add_u32 v185, 4608, v184
    s_lshl_b32 s{sT}, s{sM}, 3
    s_lshl_b32 s{sT2}, s{sTG}, 1
    s_add_u32 s{sT}, s{sT}, s{sT2}
    s_add_u32 s{sT}, s{sT}, s{sKH}
    s_mul_i32 s{sT}, s{sT}, {16*2304}
    s_mul_i32 s{sT2}, s{sJN}, 576
    s_add_u32 s{sT}, s{sT}, s{sT2}
    s_add_u32 s{sT}, s{sT}, {WS_Y}
    s_cmp_lg_u32 s{sKH}, 0
    s_cbranch_scc1 LB_s1""")
    paths = []
    for ri in range(2):
        p = e.fork()
        for nb in range(9): p.ds(f"ds_write_b128 v182, {v(ACC(1-ri, nb),4)} offset:{nb*1024}")
        p.wait(lg="all"); p.I("s_barrier")
        for nb in range(9): p.ds(f"ds_read_b128 {v(ACC(1-ri, nb),4)}, v183 offset:{nb*1024}", nb)
        for nb in range(9):
            p.wait(lg=nb)
            d = ACC(ri, nb); sr = ACC(1-ri, nb)
            for r in range(4): p.I(f"v_add_f32 v{d+r}, v{d+r}, v{sr+r}")
            for r in range(4): p.vm(f"buffer_store_dword v{d+r}, v{184 + (r >> 1)}, {srd(SWS)}, s{sT} offen offset:{(r & 1)*2304 + nb*64}")
        stamp(p, cfg, 3, 202)
        p.I("s_endpgm")
        paths.append(p)
    text = e.lines + paths[0].lines + ["LB_s1:"] + paths[1].lines
    return text, {"S0": e.lines + paths[0].lines, "S1": e.lines + paths[1].lines}

def gen_kb(cfg):
    h = Em(); head(h, cfg)
    tf, trf = gen_ffn(h.fork(), cfg)
    ts, trs = gen_ssm(h.fork(), cfg)
    errs = []
    for nm, tr in {**trf, **trs}.items(): errs += check_hazards(h.lines + tr, "KB-" + nm)
    return h.lines + tf + ts + ["LB_end:", "s_endpgm"], errs

def gen_kc(cfg):
    e = Em()
    SP, SXX, SD, SO = 8, 12, 16, 20
    e.I(f"""s_cmp_ge_u32 s2, 384
    s_cbranch_scc1 LC_end
    s_load_dwordx2 s[32:33], s[0:1], 0
    s_load_dwordx2 s[34:35], s[0:1], 64
    s_load_dwordx2 s[36:37], s[0:1], 104
    s_load_dwordx2 s[38:39], s[0:1], 120
    v_lshlrev_b32 v1, 4, v0
    s_mul_i32 s40, s2, 6144
    s_add_u32 s40, s40, {WS_PART}
    s_lshr_b32 s41, s2, 3
    s_mul_i32 s42, s41, 43
    s_lshr_b32 s42, s42, 7
    s_mul_i32 s43, s42, 3
    s_sub_u32 s43, s41, s43
    s_lshl_b32 s44, s42, 7
    s_and_b32 s45, s2, 6
    s_lshl_b32 s45, s45, 4
    s_add_u32 s44, s44, s45
    s_and_b32 s45, s2, 1
    s_lshl_b32 s45, s45, 2
    s_add_u32 s44, s44, s45
    v_mul_u32_u24 v2, 1366, v0
    v_lshrrev_b32 v2, 16, v2
    v_mul_u32_u24 v3, 48, v2
    v_sub_u32 v3, v0, v3
    v_lshrrev_b32 v4, 2, v2
    v_and_b32 v5, 3, v2
    v_lshl_add_u32 v4, v4, 3, v5
    v_add_u32 v4, s44, v4
    s_mul_i32 s46, s43, 384
    v_lshl_add_u32 v6, v3, 3, s46
    v_mul_u32_u24 v7, 1152, v4
    v_add_u32 v7, v7, v6
    v_lshlrev_b32 v8, 1, v7
    v_lshlrev_b32 v9, 3, v4
    s_mov_b32 s50, 0x00003f80
    s_mov_b32 s51, 0x3f800000
    s_waitcnt lgkmcnt(0)
    s_mov_b32 s{SP}, s38
    s_mov_b32 s{SP+1}, s39
    s_mov_b32 s{SP+2}, {WS_SIZE}
    s_mov_b32 s{SP+3}, 0x20000
    s_mov_b32 s{SXX}, s32
    s_mov_b32 s{SXX+1}, s33
    s_mov_b32 s{SXX+2}, {2048*1152}
    s_mov_b32 s{SXX+3}, 0x20000
    s_mov_b32 s{SD}, s34
    s_mov_b32 s{SD+1}, s35
    s_mov_b32 s{SD+2}, 1152
    s_mov_b32 s{SD+3}, 0x20000
    s_mov_b32 s{SO}, s36
    s_mov_b32 s{SO+1}, s37
    s_mov_b32 s{SO+2}, {2048*2304}
    s_mov_b32 s{SO+3}, 0x20000""")
    for s_ in range(4):
        e.vm(f"buffer_load_dwordx4 {v(16+4*s_,4)}, v1, {srd(SP)}, s40 offen", ("p", s_))
        if s_ < 3: e.I(f"s_add_u32 s40, s40, {16*3*4*2*6144}")
    e.I(f"s_mov_b32 s47, {WS_Y}\ns_mov_b32 s48, {WS_Y + 16*2304}\ns_mov_b32 s49, {WS_STATS}\ns_movk_i32 s52, {16*1152}\ns_mov_b32 s53, {16*2304}")
    e.vm(f"buffer_load_dwordx2 v[32:33], v7, {srd(SXX)}, 0 offen")
    e.vm(f"buffer_load_dwordx2 v[34:35], v7, {srd(SXX)}, s52 offen")
    e.vm(f"buffer_load_dwordx2 v[36:37], v9, {srd(SP)}, s49 offen")
    e.vm(f"buffer_load_dwordx2 v[38:39], v9, {srd(SP)}, s49 offen offset:128")
    e.vm(f"buffer_load_dwordx2 v[40:41], v6, {srd(SD)}, 0 offen", "xd")
    e.vm(f"buffer_load_dwordx4 v[44:47], v8, {srd(SP)}, s47 offen", "y0")
    e.vm(f"buffer_load_dwordx4 v[48:51], v8, {srd(SP)}, s48 offen", "y1")
    e.I(f"""v_and_b32 v10, 15, v0
    v_mul_u32_u24 v10, 784, v10
    v_bfe_u32 v11, v0, 4, 2
    v_lshl_add_u32 v10, v11, 4, v10
    v_lshrrev_b32 v11, 6, v0
    v_lshl_add_u32 v10, v11, 7, v10
    v_mul_u32_u24 v11, 784, v2
    v_lshl_add_u32 v11, v3, 4, v11""")
    for s_ in range(4):
        e.wait(vm=("p", s_))
        for i in range(4):
            for h in range(2):
                c = "0" if s_ == 0 else f"v{52+2*i+h}"
                e.I(f"v_dot2_f32_bf16 v{52+2*i+h}, v{16+4*s_+i}, s{50+h}, {c}")
    e.I("s_nop 2")
    e.ds("ds_write_b128 v10, v[52:55]"); e.ds("ds_write_b128 v10, v[56:59] offset:64")
    e.wait(vm="xd")
    e.I("v_lshlrev_b32 v60, 16, v40\nv_and_b32 v61, 0xffff0000, v40\nv_lshlrev_b32 v62, 16, v41\nv_and_b32 v63, 0xffff0000, v41")
    for k in range(2):
        xs = 32 + 2*k; st_ = 36 + 2*k; xv = 64 + 8*k; tt = 68 + 8*k
        e.I(f"v_lshlrev_b32 v{xv}, 16, v{xs}\nv_and_b32 v{xv+1}, 0xffff0000, v{xs}\nv_lshlrev_b32 v{xv+2}, 16, v{xs+1}\nv_and_b32 v{xv+3}, 0xffff0000, v{xs+1}")
        for r in range(4): e.I(f"v_sub_f32 v{tt+r}, v{xv+r}, v{st_}")
        def rnd():
            e.I(f"v_cvt_pk_bf16_f32 v{tt}, v{tt}, v{tt+1}\nv_cvt_pk_bf16_f32 v{tt+2}, v{tt+2}, v{tt+3}")
            e.I(f"v_and_b32 v{tt+1}, 0xffff0000, v{tt}\nv_lshlrev_b32 v{tt}, 16, v{tt}\nv_and_b32 v{tt+3}, 0xffff0000, v{tt+2}\nv_lshlrev_b32 v{tt+2}, 16, v{tt+2}")
        rnd()
        for r in range(4): e.I(f"v_mul_f32 v{tt+r}, v{tt+r}, v{st_+1}")
        rnd()
        for r in range(4): e.I(f"v_mul_f32 v{tt+r}, v{tt+r}, v{60+r}")
        rnd()
    e.wait(lg="all"); e.I("s_barrier")
    e.ds("ds_read_b128 v[16:19], v11", 0); e.ds(f"ds_read_b128 v[20:23], v11 offset:{8*784}", 1)
    for k in range(2):
        xv = 64 + 8*k; tt = 68 + 8*k; y = 44 + 4*k; f = 16 + 4*k
        e.wait(vm=f"y{k}")
        for r in range(4): e.I(f"v_add_f32 v{y+r}, v{y+r}, v{tt+r}")
        for r in range(4): e.I(f"v_add_f32 v{y+r}, v{xv+r}, v{y+r}")
        e.wait(lg=k)
        for r in range(4): e.I(f"v_add_f32 v{y+r}, v{y+r}, v{f+r}")
        e.vm(f"buffer_store_dwordx4 {v(y,4)}, v8, {srd(SO)}, {'s53' if k else '0'} offen")
    e.I("LC_end:\ns_endpgm")
    return e.lines, check_hazards(e.lines, "KC")
```

```python
import sys
import ka, kb
NAME = "parallel_sum__ssm_conv_s5__glu_gated_swiglu__prompt"
def kdesc(name, vg, sg=102):
    return f""".amdhsa_kernel {name}
  .amdhsa_next_free_vgpr {vg}
  .amdhsa_next_free_sgpr {sg}
  .amdhsa_accum_offset {(vg+3)//4*4}
  .amdhsa_group_segment_fixed_size 0
  .amdhsa_kernarg_size 128
  .amdhsa_user_sgpr_count 2
  .amdhsa_user_sgpr_kernarg_segment_ptr 1
  .amdhsa_system_sgpr_workgroup_id_x 1
.end_amdhsa_kernel"""
def build(cfg, which="ABC"):
    ta, ea = ka.gen_ka(cfg); tb, eb = kb.gen_kb(cfg); tc, ec = kb.gen_kc(cfg)
    errs = ea + eb + ec
    hdr = open("cdna_kernels/" + NAME + ".s.ref").read().split("; Override launch")[0]
    out = [hdr.rstrip()]
    if "A" in which: out.append("; @launch kernel=ka_kernel grid=(256,1,1) block=(512,1,1) lds=163840")
    if "B" in which: out.append("; @launch kernel=kb_kernel grid=(256,1,1) block=(512,1,1) lds=163840")
    if "C" in which: out.append("; @launch kernel=kc_kernel grid=(384,1,1) block=(384,1,1) lds=12544")
    out.append('.amdgcn_target "amdgcn-amd-amdhsa--gfx950"\n.text')
    for nm, t in (("ka_kernel", ta), ("kb_kernel", tb), ("kc_kernel", tc)):
        out.append(f".globl {nm}\n.p2align 8\n.type {nm},@function\n{nm}:")
        out += [("    " + l if not l.endswith(":") else l) for l in t]
    out.append('.section .rodata,"a"')
    for nm, vg in (("ka_kernel", 256), ("kb_kernel", 208), ("kc_kernel", 80)):
        out.append(".p2align 6\n" + kdesc(nm, vg))
    return "\n".join(out) + "\n", errs
def mkcfg(**kw):
    d = dict(B=6, BB=1, HD=4); d.update(kw); return ka.Cfg(**d)
if __name__ == "__main__":
    kw = {}
    outp = "cdna_kernels/" + NAME + ".s"
    for a in sys.argv[1:]:
        k, x = a.split("=")
        if k == "out": outp = x
        else: kw[k] = int(x)
    t, errs = build(mkcfg(**kw))
    for e in errs[:50]: print(e)
    open(outp, "w").write(t)
    print("written", outp, len(t), "bytes; hazards:", len(errs))
```
